```python
import torch

def _softmax(x, axis=-1):
    return torch.softmax(x, dim=axis)
def _gelu(x):
    return torch.nn.functional.gelu(x, approximate="tanh")
def _silu(x):
    return torch.nn.functional.silu(x)
def _sigmoid(x):
    return torch.sigmoid(x)
def _layernorm(x, axis=-1, eps=1e-5):
    m = x.mean(dim=axis, keepdim=True)
    v = x.var(dim=axis, keepdim=True, unbiased=False)
    return (x - m) / torch.sqrt(v + eps)
def _scatter_add(tgt, idx, src, axis=0):
    return tgt.clone().index_add_(axis, idx, src)
def _segment_sum(src, seg, n):
    out = torch.zeros((n,) + src.shape[1:], dtype=src.dtype)
    return out.index_add_(0, seg, src)
def _pad(x, pw):
    flat = tuple(v for pair in reversed(pw) for v in pair)
    return torch.nn.functional.pad(x, flat)

kernel_name = 'gated_mix__spectral_gfnet__dense_activation_gelu__prompt'

def setup_inputs():

    _w = (lambda a: (lambda t: t.to(torch.bfloat16) if t.is_floating_point() else t)(torch.as_tensor(a)))
    def _A_setup():
        B, S, D = 1, 2048, 512
        Df = D // 2 + 1
        return {
            "x": _w((lambda *s: torch.randn(*s, dtype=torch.bfloat16) * 0.05)(B, S, D)),
            "w_r": _w((lambda *s: torch.randn(*s, dtype=torch.bfloat16) * 0.8)(S, Df) * 0.02),
            "w_i": _w((lambda *s: torch.randn(*s, dtype=torch.bfloat16) * 0.8)(S, Df) * 0.02),
        }
    _A_in = _A_setup()

    def _B_setup():
        B, S, D, F = 1, 2048, 512, 1792
        return {
            "x": _w((lambda *s: torch.randn(*s, dtype=torch.bfloat16) * 0.05)(B, S, D)),
            "w1": _w((lambda *s: torch.randn(*s, dtype=torch.bfloat16) * 3.2)(D, F) * (D ** -0.5)),
            "b1": _w((lambda *s: torch.randn(*s, dtype=torch.bfloat16) * 3.2)(F) * 0.01),
            "w2": _w((lambda *s: torch.randn(*s, dtype=torch.bfloat16) * 0.05)(F, D) * (F ** -0.5)),
            "b2": _w((lambda *s: torch.randn(*s, dtype=torch.bfloat16) * 0.1)(D) * 0.01),
        }
    _B_in = _B_setup()

    return {
        "A_x": _A_in["x"],
        "A_w_r": _A_in["w_r"],
        "A_w_i": _A_in["w_i"],
        "B_x": _B_in["x"],
        "B_w1": _B_in["w1"],
        "B_b1": _B_in["b1"],
        "B_w2": _B_in["w2"],
        "B_b2": _B_in["b2"],
        "gate_w": _w((lambda *s: torch.randn(*s, dtype=torch.bfloat16) * 0.05)(512) * 16.0),
    }

def reference(A_x, A_w_r, A_w_i, B_x, B_w1, B_b1, B_w2, B_b2, gate_w):
    def _A_ref(x, w_r, w_i):
        B, S, D = x.shape
        X = (lambda x, axes=(-2,-1): torch.fft.rfft2(x.float(), dim=axes))(x, axes=(-2, -1))
        W = w_r + 1j * w_i
        X = X * W
        y = (lambda x, s, axes=(-2,-1): torch.fft.irfft2(x, s=s, dim=axes).to(torch.bfloat16))(X, (S, D), axes=(-2, -1))
        return y

    def _B_ref(x, w1, b1, w2, b2):
        h = torch.einsum("bsd,df->bsf", x, w1) + b1
        h = _gelu(h)
        return torch.einsum("bsf,fd->bsd", h, w2) + b2

    x = A_x
    g = _sigmoid((x * gate_w).sum(-1, keepdims=True))
    a = _A_ref(x, A_w_r, A_w_i)
    b = _B_ref(x, B_w1, B_b1, B_w2, B_b2)
    return g * a + (1 - g) * b
```

```python
import re


def vr(a, n=1):
    return f"v{a}" if n == 1 else f"v[{a}:{a + n - 1}]"


def sr(a, n=1):
    return f"s{a}" if n == 1 else f"s[{a}:{a + n - 1}]"


_REG = re.compile(r"(?<![\w.])(-|\|)?([vs])(?:(\d+)|\[(\d+):(\d+)\])(?![\w])")
TRANS = ("v_exp_f32", "v_log_f32", "v_rcp_f32", "v_rsq_f32", "v_sqrt_f32", "v_sin_f32", "v_cos_f32")


def regs_of(op):
    out = set()
    for m in _REG.finditer(op):
        kind = m.group(2)
        if m.group(3) is not None:
            out.add((kind, int(m.group(3))))
        else:
            for r in range(int(m.group(4)), int(m.group(5)) + 1):
                out.add((kind, r))
    if re.search(r"(?<!\w)vcc(?!\w)", op):
        out.add(("s", "vcc"))
    if re.search(r"(?<!\w)m0(?!\w)", op):
        out.add(("s", "m0"))
    if re.search(r"(?<!\w)exec(?!\w)", op):
        out.add(("s", "exec"))
    return out


class Ins:
    def __init__(self, text):
        self.text = text
        t = text.split(";")[0].strip()
        self.is_label = t.endswith(":")
        self.is_dir = t.startswith(".")
        parts = t.split(None, 1)
        self.mn = parts[0] if parts else ""
        ops = [o.strip() for o in re.split(r",(?![^\[]*\])", parts[1])] if len(parts) > 1 else []
        self.ops = ops
        mn = self.mn
        self.dst, self.src = set(), set()
        self.kind = "other"
        self.srcC = set()
        if self.is_label or self.is_dir or not mn:
            self.kind = "none"
        elif mn.startswith("v_mfma"):
            self.kind = "mfma"
            self.passes = 8 if "32x32x16" in mn else 4
            self.dst = regs_of(ops[0])
            self.srcAB = regs_of(ops[1]) | regs_of(ops[2])
            self.srcC = regs_of(ops[3])
            self.src = self.srcAB | self.srcC
        elif mn.startswith("v_"):
            self.kind = "valu"
            self.dst = regs_of(ops[0])
            rest = ops[1:]
            if mn.startswith(("v_add_co", "v_sub_co", "v_addc_co", "v_subb_co")):
                self.dst |= regs_of(ops[1])
                rest = ops[2:]
            for o in rest:
                self.src |= regs_of(o)
            if mn.startswith(("v_fmac", "v_permlane", "v_writelane")) or "_dpp" in mn:
                self.src |= regs_of(ops[0])
            if mn.startswith("v_permlane"):
                self.dst |= regs_of(ops[1])
            if mn.startswith("v_cndmask") and len(ops) == 3:
                self.src.add(("s", "vcc"))
        elif mn.startswith(("buffer_", "global_")):
            self.kind = "vmem"
            lds = re.search(r"(?<!\w)lds(?!\w)", t) is not None
            self.lds = lds
            if "load" in mn and not lds:
                self.dst = regs_of(ops[0])
                for o in ops[1:]:
                    self.src |= regs_of(o)
            else:
                for o in ops:
                    self.src |= regs_of(o)
                if lds:
                    self.src.add(("s", "m0"))
            self.wide_store = "store" in mn and ("x3" in mn or "x4" in mn)
            if self.wide_store:
                self.data = regs_of(ops[0] if mn.startswith("buffer_") else ops[1])
        elif mn.startswith("ds_"):
            self.kind = "ds"
            if "read" in mn or "permute" in mn or "swizzle" in mn:
                self.dst = regs_of(ops[0])
                for o in ops[1:]:
                    self.src |= regs_of(o)
            else:
                for o in ops:
                    self.src |= regs_of(o)
        elif mn.startswith("s_"):
            self.kind = "salu"
            if mn.startswith(("s_cmp", "s_bitcmp", "s_cbranch", "s_branch", "s_waitcnt", "s_barrier", "s_nop",
                              "s_endpgm", "s_sleep", "s_setprio", "s_setpc")):
                for o in ops:
                    self.src |= regs_of(o)
                if "vcc" in mn:
                    self.src.add(("s", "vcc"))
            else:
                self.dst = regs_of(ops[0]) if ops else set()
                for o in ops[1:]:
                    self.src |= regs_of(o)
                if "saveexec" in mn:
                    self.dst.add(("s", "exec"))
        self.is_branch = mn.startswith(("s_cbranch", "s_branch", "s_call", "s_setpc", "s_swappc"))

    def states(self):
        if self.kind == "none":
            return 0
        if self.mn == "s_nop":
            return int(self.ops[0]) + 1
        return 1


def need(p, c):
    n = 0
    vd = {r for r in p.dst if r[0] == "v"}
    sd = {r for r in p.dst if r[0] == "s"}
    if p.kind == "valu":
        if c.kind == "mfma" and vd & c.src:
            n = max(n, 2)
        if c.kind == "valu":
            if p.mn.startswith(TRANS) and not c.mn.startswith(TRANS) and vd & c.src:
                n = max(n, 1)
            if p.mn.startswith(TRANS) and c.mn.startswith(TRANS) and vd & c.src:
                n = max(n, 1)
            if c.mn.startswith("v_permlane") and vd & c.src:
                n = max(n, 2)
            if c.mn.startswith(("v_readfirstlane", "v_readlane")) and vd & c.src:
                n = max(n, 1)
            if "_dpp" in c.mn and vd & c.src:
                n = max(n, 2)
            if sd & c.src:
                n = max(n, 4 if c.mn.startswith(("v_readlane", "v_writelane")) else 2)
            if p.mn.startswith("v_dot") and vd & (c.src | c.dst):
                n = max(n, 3)
        if c.kind in ("vmem", "ds") and p.mn.startswith(TRANS + ("v_dot",)) and vd & c.src:
            n = max(n, 3)
        if c.kind == "vmem" and sd & c.src:
            n = max(n, 5)
        if c.kind == "salu" and sd & c.src:
            n = max(n, 2)
    if p.kind == "mfma":
        big = 12 if p.passes == 8 else 8
        if c.kind == "mfma":
            if p.dst & c.srcAB:
                n = max(n, big)
            if p.dst & c.srcC and not (p.dst == c.srcC and p.passes == c.passes):
                n = max(n, big - 2)
            if p.dst & c.dst and not (p.dst == c.srcC and p.passes == c.passes):
                n = max(n, big)
        elif c.kind in ("valu", "vmem", "ds"):
            if p.dst & (c.src | c.dst):
                n = max(n, big)
            if c.kind == "valu" and p.srcC & c.dst:
                n = max(n, 7 if p.passes == 8 else 3)
    if p.kind == "salu" and ("s", "m0") in p.dst and c.kind == "vmem" and ("s", "m0") in c.src:
        n = max(n, 1)
    if p.kind == "vmem" and getattr(p, "wide_store", False) and c.kind in ("valu", "mfma", "ds", "vmem") and p.data & c.dst:
        n = max(n, 2)
    return n


def worst(p):
    if p.kind == "mfma":
        return 12 if p.passes == 8 else 8
    if p.kind == "valu":
        return 5 if any(r[0] == "s" for r in p.dst) else 3 if p.mn.startswith("v_dot") else 2
    if p.kind == "vmem" and getattr(p, "wide_store", False):
        return 2
    if p.kind == "salu" and ("s", "m0") in p.dst:
        return 1
    return 0


class Asm:
    def __init__(self):
        self.lines = []
        self.vm = []
        self.uid = 0
        self.seen = set()

    def __call__(self, text, tag=None):
        for ln in text.strip().split("\n"):
            ln = ln.strip()
            if not ln:
                continue
            self.lines.append(ln)
            if ln.startswith(("buffer_", "global_")):
                self.vm.append(tag)
                self.seen.add(tag)

    def label(self, name):
        self.lines.append(name + ":")

    def newlabel(self, stem):
        self.uid += 1
        return f"L_{stem}_{self.uid}"

    def vm_reset(self):
        self.vm = []

    def wait_vm(self, *tags, extra=""):
        idx = max((i for i, t in enumerate(self.vm) if t in tags), default=None)
        if idx is None:
            assert any(t in self.seen for t in tags), f"no op was ever tagged {tags}"
            if extra:
                self(f"s_waitcnt {extra}")
            return
        n = len(self.vm) - 1 - idx
        assert n <= 63, n
        self(f"s_waitcnt vmcnt({n}) {extra}".strip())
        self.vm = self.vm[idx + 1:]

    def wait_vm_all(self, extra=""):
        self(f"s_waitcnt vmcnt(0) {extra}".strip())
        self.vm = []

    def finish(self):
        out = []
        hist = []
        for ln in self.lines:
            ins = Ins(ln)
            if ins.kind == "none":
                out.append(ln)
                continue
            pad = 0
            for p, age in hist:
                req = worst(p) - 1 if (ins.is_branch and "; safe" not in ln) else need(p, ins)
                pad = max(pad, req - age)
            while pad > 0:
                k = min(pad, 16)
                out.append(f"s_nop {k - 1}")
                hist = [(p, a + k) for p, a in hist]
                pad -= k
            out.append(ln)
            st = ins.states()
            hist = [(p, a + st) for p, a in hist if a + st < 20]
            hist.append((ins, 0))
        return "\n".join(("" if l.endswith(":") or l.startswith(".") else "    ") + l for l in out) + "\n"
```

```python
import math
import struct
import sys
from asmlib import Asm, vr, sr

NAME = "gated_mix__spectral_gfnet__dense_activation_gelu__prompt_kernel"
PROF = "--prof" in sys.argv


def fb(x):
    return "0x%08x" % struct.unpack("<I", struct.pack("<f", x))[0]


SYNC, GATE, WT, X1, YO, HO, TS = 0, 0x8000, 0x10000, 0x300000, 0x600000, 0x900000, 0x1100000
DUMMY = 0x1200000
WT_K, X1_CG, Y_KC, H_P = 8320, 16640, 4224, 229376
LN_WT, LN_X1, LN_Y, LN_H = 0, 64, 72, 128
WS_BYTES = 0x1200000
BRING, ARING, EXCH, UV = 0, 73728, 147456, 73728
EXCH2 = ARING + 7 * 8192
NSLOT = 9
S_X, S_WR, S_WI, S_W1, S_B1, S_W2, S_B2, S_GW, S_OUT, S_DBG, S_WS = range(28, 72, 4)
sWAVE, sW4, sXC, sJ, sB, sC, sP, sT, sK = 4, 5, 6, 7, 8, 9, 10, 11, 12
sRET = 26
sTS = 82
LANE = 170
FFT_WG = 120
SPIN_MAX = 200000

a = Asm()
nstamp = {}


def stamp(role, idx):
    if PROF:
        assert idx < 10
        a(f"s_memtime {sr(sTS + 2 * idx, 2)}")


def prof_store():
    if not PROF:
        return
    a("s_waitcnt lgkmcnt(0)")
    for i in range(10):
        a(f"v_mov_b32 v{i}, s{sTS + 2 * i}")
    a(f"""
    s_lshl_b32 s13, s2, 3
    s_add_u32 s13, s13, s{sWAVE}
    s_lshl_b32 s13, s13, 6
    s_add_u32 s13, s13, {TS}
    v_mov_b32 v12, 0
    s_mov_b64 exec, 1
    buffer_store_dwordx4 v[0:3], v12, {sr(S_WS, 4)}, s13 offen
    buffer_store_dwordx4 v[4:7], v12, {sr(S_WS, 4)}, s13 offen offset:16
    buffer_store_dwordx2 v[8:9], v12, {sr(S_WS, 4)}, s13 offen offset:32
    """)


def spin_until(vaddr, vtmp, srd, expect, soff="0"):
    top, out = a.newlabel("spin"), a.newlabel("spun")
    a("s_mov_b32 s3, 0")
    a.label(top)
    a(f"""
    buffer_load_dword v{vtmp}, v{vaddr}, {sr(srd, 4)}, {soff} offen sc1
    s_add_u32 s3, s3, 1
    s_cmp_gt_u32 s3, {SPIN_MAX}
    s_cbranch_scc1 {out}
    s_waitcnt vmcnt(0)
    v_cmp_ne_u32 vcc, {expect}, v{vtmp}
    s_cbranch_vccnz {top}
    """)
    a.label(out)
    a.wait_vm_all()


def ready_load(v, vzero):
    a(f"buffer_load_dword v{v}, v{vzero}, {sr(S_DBG, 4)}, 0 offen sc1", "rdy")


def ready_check(v, vzero):
    ok = a.newlabel("rdy")
    a(f"""
    v_cmp_ne_u32 vcc, 1, v{v}
    s_cbranch_vccz {ok}
    """)
    keep = list(a.vm)
    spin_until(vzero, v, S_DBG, 1)
    a.vm = keep
    a.label(ok)


def signal(sline, v0, v1):
    a(f"""
    s_lshl_b32 s3, s{sline}, 7
    v_mov_b32 v{v0}, 0
    v_mov_b32 v{v1}, 1
    s_mov_b64 exec, 1
    buffer_atomic_add v{v1}, v{v0}, {sr(S_WS, 4)}, s3 offen
    s_mov_b64 exec, -1
    """, "sig")


def entry():
    a(f"""
    s_cmp_ge_u32 s2, 256
    s_cbranch_scc1 L_end
    """)
    stamp("all", 0)
    for srd, off in ((S_X, 0), (S_W1, 32), (S_WS, 88), (S_WR, 8), (S_WI, 16), (S_B1, 40), (S_W2, 48), (S_B2, 56),
                     (S_GW, 64), (S_OUT, 72), (S_DBG, 80)):
        a(f"s_load_dwordx2 {sr(srd, 2)}, s[0:1], {off}")
    a(f"""
    v_lshrrev_b32 v1, 6, v0
    v_and_b32 v{LANE}, 63, v0
    v_readfirstlane_b32 s{sWAVE}, v1
    s_and_b32 s{sXC}, s2, 7
    s_lshr_b32 s{sJ}, s2, 3
    s_lshr_b32 s3, s{sJ}, 4
    s_lshl_b32 s{sB}, s{sXC}, 1
    s_add_u32 s{sB}, s{sB}, s3
    s_and_b32 s{sC}, s{sJ}, 15
    s_and_b32 s{sW4}, s{sWAVE}, 3
    """)
    for srd, n in ((S_X, 2097152), (S_W1, 1835008), (S_WS, WS_BYTES), (S_WR, 1052672), (S_WI, 1052672), (S_B1, 3584),
                   (S_W2, 1835008), (S_B2, 1024), (S_GW, 1024), (S_OUT, 2097152), (S_DBG, 256)):
        a(f"s_mov_b32 s{srd + 2}, {n}\ns_mov_b32 s{srd + 3}, 0x20000")
    a(f"""
    s_lshr_b32 s3, s{sJ}, 3
    s_lshl_b32 s{sP}, s{sXC}, 2
    s_add_u32 s{sP}, s{sP}, s3
    s_and_b32 s{sT}, s{sJ}, 7
    s_xor_b32 s{sK}, s2, {FFT_WG}
    s_cmp_lt_u32 s{sWAVE}, 4
    s_cbranch_scc1 L_cons
    s_cmp_ge_u32 s{sC}, 14
    s_cbranch_scc1 L_load2
    """)


class Side:
    def __init__(self, base):
        self.wr = base
        self.wi = base + 8
        self.c = base + 16
        self.gx = base + 18
        self.gw = base + 26
        self.t = base + 30
        self.rdy = base + 38
        self.zero = base + 39

    def issue(self):
        t = self.t
        a(f"""
        s_lshr_b32 s13, s{sJ}, 2
        s_lshl_b32 s13, s13, 3
        s_add_u32 s13, s13, s{sXC}
        s_and_b32 s14, s{sJ}, 3
        s_lshr_b32 s15, s13, 4
        s_lshl_b32 s15, s15, 9
        s_bfe_u32 s16, s13, 0x20001
        s_lshl_b32 s16, s16, 7
        s_add_u32 s15, s15, s16
        s_bfe_u32 s16, s13, 0x10003
        s_lshl_b32 s16, s16, 4
        s_add_u32 s15, s15, s16
        s_and_b32 s16, s13, 1
        s_lshl_b32 s16, s16, 3
        s_add_u32 s15, s15, s16
        s_lshl_b32 s16, s{sW4}, 1
        s_add_u32 s15, s15, s16
        s_mul_i32 s19, s15, 514
        s_lshl_b32 s16, s14, 7
        s_add_u32 s15, s19, s16
        s_add_u32 s16, s15, 16448
        s_add_u32 s17, s16, 16448
        s_add_u32 s18, s17, 16448
        v_lshlrev_b32 v{t}, 1, v{LANE}
        v_lshlrev_b32 v{t + 1}, 4, v{LANE}
        v_bfe_u32 v{t + 2}, v{LANE}, 2, 1
        v_mul_u32_u24 v{t + 2}, 514, v{t + 2}
        v_and_b32 v{t + 3}, 3, v{LANE}
        v_mul_u32_u24 v{t + 3}, 16448, v{t + 3}
        v_add3_u32 v{t + 2}, v{t + 2}, v{t + 3}, 64
        v_mov_b32 v{self.zero}, 0
        s_lshr_b32 s20, s{sW4}, 1
        s_lshl_b32 s20, s20, 4
        s_and_b32 s21, s{sC}, 3
        s_lshl_b32 s21, s21, 2
        s_add_u32 s20, s20, s21
        s_and_b32 s21, s{sW4}, 1
        s_lshl_b32 s21, s21, 1
        s_add_u32 s20, s20, s21
        s_lshl_b32 s20, s20, 6
        s_lshl_b32 s21, s{sB}, 2
        s_add_u32 s20, s20, s21
        s_lshr_b32 s21, s{sC}, 2
        s_add_u32 s20, s20, s21
        s_lshl_b32 s20, s20, 10
        s_add_u32 s21, s20, 65536
        """)
        a(f"""
        buffer_load_dwordx4 {vr(self.gx, 4)}, v{t + 1}, {sr(S_X, 4)}, s20 offen
        buffer_load_dwordx4 {vr(self.gx + 4, 4)}, v{t + 1}, {sr(S_X, 4)}, s21 offen
        buffer_load_dwordx4 {vr(self.gw, 4)}, v{t + 1}, {sr(S_GW, 4)}, 0 offen
        """, "side")
        for be in range(2):
            for i in range(4):
                a(f"buffer_load_ushort v{self.wr + 4 * be + i}, v{t}, {sr(S_WR, 4)}, s{15 + i} offen offset:{514 * be}", "side")
                a(f"buffer_load_ushort v{self.wi + 4 * be + i}, v{t}, {sr(S_WI, 4)}, s{15 + i} offen offset:{514 * be}", "side")
        a(f"""
        buffer_load_ushort v{self.c}, v{t + 2}, {sr(S_WR, 4)}, s19 offen offset:448
        buffer_load_ushort v{self.c + 1}, v{t + 2}, {sr(S_WI, 4)}, s19 offen offset:448
        """, "side")

    def w_write(self):
        t = self.t
        a.wait_vm("side")
        for i in range(8):
            a(f"v_lshl_or_b32 v{self.wr + i}, v{self.wi + i}, 16, v{self.wr + i}")
        a(f"""
        v_lshl_or_b32 v{self.c}, v{self.c + 1}, 16, v{self.c}
        s_lshl_b32 s15, s{sW4}, 1
        v_and_b32 v{t}, 7, v{LANE}
        v_xor_b32 v{t}, s15, v{t}
        v_lshlrev_b32 v{t}, 4, v{t}
        v_lshl_add_u32 v{t}, v{LANE}, 7, v{t}
        v_add_u32 v{t}, {EXCH}, v{t}
        v_xor_b32 v{t + 1}, 16, v{t}
        ds_write_b128 v{t}, {vr(self.wr, 4)}
        ds_write_b128 v{t + 1}, {vr(self.wr + 4, 4)}
        s_lshl_b32 s15, s13, 7
        s_lshl_b32 s16, s{sW4}, 5
        s_add_u32 s15, s15, s16
        s_add_u32 s15, s15, {WT + 256 * WT_K}
        s_cmp_eq_u32 s14, 3
        s_cselect_b32 s15, s15, {DUMMY}
        v_lshlrev_b32 v{t + 2}, 2, v{LANE}
        s_mov_b64 exec, 0xff
        """)
        a(f"buffer_store_dword v{self.c}, v{t + 2}, {sr(S_WS, 4)}, s15 offen sc1", "wst")
        a("s_mov_b64 exec, -1\ns_waitcnt lgkmcnt(0)")

    def w_store(self):
        t = self.t
        a(f"""
        s_lshl_b32 s15, s{sW4}, 11
        s_add_u32 s15, s15, {EXCH}
        v_lshl_add_u32 v{t}, v{LANE}, 4, s15
        ds_read_b128 {vr(self.wr, 4)}, v{t}
        ds_read_b128 {vr(self.wr + 4, 4)}, v{t} offset:1024
        v_lshrrev_b32 v{t + 1}, 3, v{LANE}
        v_and_b32 v{t + 2}, 7, v{LANE}
        v_xor_b32 v{t + 2}, v{t + 2}, v{t + 1}
        v_mul_u32_u24 v{t + 1}, {WT_K}, v{t + 1}
        v_lshl_add_u32 v{t + 1}, v{t + 2}, 4, v{t + 1}
        s_lshl_b32 s15, s14, 2
        s_add_u32 s15, s15, s{sW4}
        s_mul_i32 s15, s15, {16 * WT_K}
        s_lshl_b32 s16, s13, 7
        s_add_u32 s15, s15, s16
        s_add_u32 s15, s15, {WT}
        s_add_u32 s16, s15, {8 * WT_K}
        """)
        ready_load(self.rdy, self.zero)
        a("s_waitcnt lgkmcnt(0)")
        a(f"""
        buffer_store_dwordx4 {vr(self.wr, 4)}, v{t + 1}, {sr(S_WS, 4)}, s15 offen sc1
        buffer_store_dwordx4 {vr(self.wr + 4, 4)}, v{t + 1}, {sr(S_WS, 4)}, s16 offen sc1
        """, "wst")

    def gate(self):
        t = self.t + 4
        for r in range(2):
            a(f"v_dot2_f32_bf16 v{t + r}, v{self.gx + 4 * r}, v{self.gw}, 0")
        for i in range(1, 4):
            for r in range(2):
                a(f"v_dot2_f32_bf16 v{t + r}, v{self.gx + 4 * r + i}, v{self.gw + i}, v{t + r}")
        for ctl in ("row_shr:1 row_mask:0xf bank_mask:0xf", "row_shr:2 row_mask:0xf bank_mask:0xf",
                    "row_shr:4 row_mask:0xf bank_mask:0xf", "row_shr:8 row_mask:0xf bank_mask:0xf",
                    "row_bcast:15 row_mask:0xa bank_mask:0xf", "row_bcast:31 row_mask:0xc bank_mask:0xf"):
            for r in range(2):
                a(f"v_add_f32_dpp v{t + r}, v{t + r}, v{t + r} {ctl}")
        for r in range(2):
            a(f"v_mul_f32 v{t + r}, {fb(-math.log2(math.e))}, v{t + r}")
        for r in range(2):
            a(f"v_exp_f32 v{t + r}, v{t + r}")
        for r in range(2):
            a(f"v_add_f32 v{t + r}, 1.0, v{t + r}")
        for r in range(2):
            a(f"v_rcp_f32 v{t + r}, v{t + r}")
        a(f"""
        s_lshl_b32 s15, s{sB}, 4
        s_add_u32 s15, s15, s{sC}
        s_lshl_b32 s15, s15, 2
        s_add_u32 s15, s15, s{sW4}
        s_lshl_b32 s15, s15, 3
        s_add_u32 s15, s15, {GATE}
        s_mov_b32 exec_lo, 0
        s_mov_b32 exec_hi, 0x80000000
        """)
        a(f"buffer_store_dwordx2 {vr(t, 2)}, v{self.zero}, {sr(S_WS, 4)}, s15 offen sc1", "wst")
        a("s_mov_b64 exec, -1")

    def signal(self):
        a.wait_vm("wst")
        ready_check(self.rdy, self.zero)
        a(f"""
        s_lshl_b32 s15, s14, 2
        s_and_b32 s16, s13, 3
        s_add_u32 s15, s15, s16
        s_lshl_b32 s15, s15, 2
        s_add_u32 s15, s15, s{sW4}
        """)
        signal(15, self.t, self.t + 1)


GP = 192
vLIN, vB0, vB1, vY0, vY1 = 171, 172, 173, 174, 175
sBOFF, sAOFF, sYOFF, sLDSW = 72, 73, 74, 75


def loader_p3_addr():
    a(f"""
    v_lshlrev_b32 v{vLIN}, 4, v{LANE}
    v_lshrrev_b32 v{vY1}, 3, v{LANE}
    v_and_b32 v{vB1}, 2, v{vY1}
    v_lshlrev_b32 v{vB1}, 1, v{vB1}
    v_and_b32 v{vB0}, 7, v{LANE}
    v_xor_b32 v{vB0}, v{vB0}, v{vB1}
    v_lshlrev_b32 v{vB0}, 4, v{vB0}
    v_mul_u32_u24 v{vY0}, {2 * Y_KC}, v{vY1}
    v_add_u32 v{vY0}, v{vY0}, v{vB0}
    v_lshl_add_u32 v{vB0}, v{vY1}, 10, v{vB0}
    v_add_u32 v{vB1}, {8192 - 1024}, v{vB0}
    v_add_u32 v{vY1}, {Y_KC - 1024}, v{vY0}
    s_lshl_b32 s{sLDSW}, s{sW4}, 11
    s_lshl_b32 s{sBOFF}, s{sW4}, 14
    s_lshl_b32 s3, s{sT}, 7
    s_add_u32 s{sBOFF}, s{sBOFF}, s3
    s_mul_i32 s{sAOFF}, s{sP}, {H_P}
    s_add_u32 s{sAOFF}, s{sAOFF}, s{sLDSW}
    s_add_u32 s{sAOFF}, s{sAOFF}, {HO}
    s_mul_i32 s{sYOFF}, s{sW4}, {16 * Y_KC}
    s_lshl_b32 s3, s{sP}, 7
    s_add_u32 s{sYOFF}, s{sYOFF}, s3
    s_add_u32 s{sYOFF}, s{sYOFF}, {YO}
    """)


def issue_B(n):
    a(f"s_add_u32 m0, s{sLDSW}, {BRING + (n % NSLOT) * 8192}")
    a(f"""
    buffer_load_dwordx4 v{vB0}, {sr(S_W2, 4)}, s{sBOFF} offen lds
    buffer_load_dwordx4 v{vB1}, {sr(S_W2, 4)}, s{sBOFF} offen offset:1024 lds
    """, f"B{n}")
    a(f"s_add_u32 s{sBOFF}, s{sBOFF}, 65536")


def issue_A(n):
    a(f"s_add_u32 m0, s{sLDSW}, {ARING + (n % NSLOT) * 8192}")
    if n < 28:
        a(f"""
        buffer_load_dwordx4 v{vLIN}, {sr(S_WS, 4)}, s{sAOFF} offen sc1 lds
        buffer_load_dwordx4 v{vLIN}, {sr(S_WS, 4)}, s{sAOFF} offen offset:1024 sc1 lds
        """, f"A{n}")
        a(f"s_add_u32 s{sAOFF}, s{sAOFF}, 8192")
    else:
        a(f"""
        buffer_load_dwordx4 v{vY0}, {sr(S_WS, 4)}, s{sYOFF} offen sc1 lds
        buffer_load_dwordx4 v{vY1}, {sr(S_WS, 4)}, s{sYOFF} offen offset:1024 sc1 lds
        """, f"A{n}")
        a(f"s_add_u32 s{sYOFF}, s{sYOFF}, {64 * Y_KC}")


def sub_ggen():
    st, t = 60, 92
    a.label("L_ggen")
    a(f"""
    v_and_b32 v{t}, 31, v{LANE}
    s_lshl_b32 s15, s{sT}, 6
    v_add_u32 v{t}, s15, v{t}
    v_cvt_f32_u32 v{t}, v{t}
    v_lshrrev_b32 v{t + 1}, 5, v{LANE}
    v_cvt_f32_u32 v{t + 1}, v{t + 1}
    v_mul_f32 v{t + 1}, 0.25, v{t + 1}
    s_lshl_b32 s15, s{sW4}, 3
    v_cvt_f32_u32 v{t + 2}, s15
    """.replace("0.25", fb(0.25)))
    for wc in range(2):
        df, mu, a32 = t + 3, t + 4, t + 5
        c0, c1 = st + 16 * wc, st + 16 * wc + 8
        a(f"""
        v_add_f32 v{df}, {fb(32.0 * wc)}, v{t}
        v_mul_f32 v{df}, {fb(1 / 512)}, v{df}
        v_mul_f32 v{a32}, {fb(32.0)}, v{df}
        v_cos_f32 v{mu}, v{a32}
        v_fma_f32 v{c0}, v{t + 2}, v{df}, v{t + 1}
        v_add_f32 v{mu}, v{mu}, v{mu}
        """)
        for j in range(1, 8):
            a(f"v_add_f32 v{c0 + j}, v{c0 + j - 1}, v{df}")
        for j in range(8):
            a(f"v_add_f32 v{c1 + j}, v{c0 + j}, v{a32}")
        for j in range(16):
            a(f"v_cos_f32 v{c0 + j}, v{c0 + j}")
        cur, prev = c1, c0
        for sg in range(8):
            if sg >= 2:
                for j in range(8):
                    a(f"v_fma_f32 v{prev + j}, v{mu}, v{cur + j}, -v{prev + j}")
                cur, prev = prev, cur
            src = c0 if sg == 0 else cur
            for j in range(4):
                a(f"v_cvt_pk_bf16_f32 v{GP + 8 * sg + 4 * wc + j}, v{src + 2 * j}, v{src + 2 * j + 1}")
    skip = a.newlabel("gsp")
    a(f"""
    s_cmp_lg_u32 s{sW4}, 0
    s_cbranch_scc1 {skip}
    v_lshrrev_b32 v{t}, 5, v{LANE}
    v_and_b32 v{t}, v{t}, v{LANE}
    v_lshlrev_b32 v{t}, 15, v{t}
    v_or_b32 v{t}, 0x3f00, v{t}
    s_mov_b32 s15, 0xffff
    v_bfi_b32 v{GP}, s15, v{t}, v{GP}
    v_bfi_b32 v{GP + 4}, s15, v{t}, v{GP + 4}
    """)
    a.label(skip)
    a(f"s_setpc_b64 {sr(sRET, 2)}")


def loader1():
    vx, vw, t = 2, 6, 10
    sx, sw, sl = 22, 23, 24
    a(f"""
    v_lshrrev_b32 v{t}, 5, v{LANE}
    v_lshlrev_b32 v{t}, 4, v{t}
    v_bfe_u32 v{t + 1}, v{LANE}, 3, 2
    v_add_u32 v{t}, v{t}, v{t + 1}
    v_lshlrev_b32 v{t}, 16, v{t}
    v_lshrrev_b32 v{t + 1}, 4, v{LANE}
    v_and_b32 v{t + 2}, 7, v{LANE}
    v_xor_b32 v{t + 2}, v{t + 2}, v{t + 1}
    v_lshl_add_u32 v{vx}, v{t + 2}, 4, v{t}
    v_xor_b32 v{vx + 1}, 64, v{vx}
    v_add_u32 v{vx + 1}, {4 * 65536 - 1024}, v{vx + 1}
    v_add_u32 v{vx + 2}, {8 * 65536 - 2048}, v{vx}
    v_add_u32 v{vx + 3}, {8 * 65536 - 2048}, v{vx + 1}
    v_bfe_u32 v{t}, v{LANE}, 2, 2
    v_xor_b32 v{t}, v{t}, v{t + 1}
    v_and_b32 v{t + 2}, 3, v{LANE}
    v_lshl_add_u32 v{t}, v{t}, 2, v{t + 2}
    v_mul_u32_u24 v{t + 1}, 3584, v{t + 1}
    v_lshl_add_u32 v{vw}, v{t}, 4, v{t + 1}
    v_add_u32 v{vw + 1}, {14336 - 1024}, v{vw}
    v_add_u32 v{vw + 2}, {2 * (14336 - 1024)}, v{vw}
    v_add_u32 v{vw + 3}, {3 * (14336 - 1024)}, v{vw}
    s_lshl_b32 s{sx}, s{sB}, 2
    s_add_u32 s{sx}, s{sx}, s{sW4}
    s_lshl_b32 s{sx}, s{sx}, 10
    s_mul_i32 s{sw}, s{sW4}, {16 * 3584}
    s_lshl_b32 s3, s{sC}, 8
    s_add_u32 s{sw}, s{sw}, s3
    s_lshl_b32 s{sl}, s{sW4}, 12
    s_waitcnt lgkmcnt(0)
    """)

    def stage(n):
        a(f"s_add_u32 m0, s{sl}, {(n & 3) * 32768}")
        for ii in range(4):
            a(f"buffer_load_dwordx4 v{vx + ii}, {sr(S_X, 4)}, s{sx} offen offset:{ii * 1024} lds", f"st{n}")
        a(f"s_add_u32 m0, s{sl}, {(n & 3) * 32768 + 16384}\ns_add_u32 s{sx}, s{sx}, 128")
        for ii in range(4):
            a(f"buffer_load_dwordx4 v{vw + ii}, {sr(S_W1, 4)}, s{sw} offen offset:{ii * 1024} lds", f"st{n}")
        a(f"s_add_u32 s{sw}, s{sw}, {64 * 3584}")

    for n in range(4):
        stage(n)
    stamp("L", 1)
    sd = Side(12)
    sd.issue()
    loader_p3_addr()
    a(f"s_call_b64 {sr(sRET, 2)}, L_ggen")
    for n in range(8):
        a.wait_vm(f"st{n}")
        a("s_barrier")
        if n == 0:
            stamp("L", 2)
        if 1 <= n <= 4:
            stage(n + 3)
        if n == 3:
            sd.w_write()
        if n == 4:
            sd.w_store()
            sd.gate()
        if n == 5:
            for m in range(0, 4):
                issue_B(m)
        if n == 6:
            for m in range(4, 8):
                issue_B(m)
        if n == 7:
            issue_B(8)
    stamp("L", 3)
    sd.signal()
    a("s_branch L_load_common")


def loader2():
    a.label("L_load2")
    a.vm_reset()
    vx, vd, t = 2, 6, 160
    XS = 32
    sx, sg = 22, 23
    a(f"""
    v_lshrrev_b32 v{t}, 3, v{LANE}
    v_and_b32 v{t + 1}, 7, v{LANE}
    v_lshlrev_b32 v{t + 2}, 16, v{t}
    v_lshl_add_u32 v{vx}, v{t + 1}, 4, v{t + 2}
    v_add_u32 v{vx + 1}, {16 * 65536}, v{vx}
    v_add_u32 v{vx + 2}, {8 * 65536}, v{vx}
    v_add_u32 v{vx + 3}, {24 * 65536}, v{vx}
    s_lshl_b32 s{sx}, s{sB}, 2
    s_add_u32 s{sx}, s{sx}, s{sW4}
    s_lshl_b32 s{sx}, s{sx}, 10
    s_waitcnt lgkmcnt(0)
    """)
    for sgm in range(4):
        for ii in range(4):
            r = XS + 32 * sgm + 8 * ii
            a(f"""
            buffer_load_dwordx4 {vr(r, 4)}, v{vx + ii}, {sr(S_X, 4)}, s{sx} offen offset:{128 * sgm}
            buffer_load_dwordx4 {vr(r + 4, 4)}, v{vx + ii}, {sr(S_X, 4)}, s{sx} offen offset:{128 * sgm + 512}
            """, f"x{sgm}_{ii}")
    stamp("L", 1)
    sd = Side(176)
    sd.issue()
    a(f"""
    v_lshrrev_b32 v{t + 2}, 4, v{LANE}
    v_xor_b32 v{t + 1}, v{t + 1}, v{t + 2}
    v_lshlrev_b32 v{t + 1}, 4, v{t + 1}
    v_lshl_add_u32 v{vd}, v{t}, 7, v{t + 1}
    s_lshl_b32 s3, s{sW4}, 12
    s_add_u32 s3, s3, {UV}
    v_add_u32 v{vd}, s3, v{vd}
    v_xor_b32 v{vd + 1}, 64, v{vd}
    s_cmp_eq_u32 s{sC}, 14
    s_cselect_b32 s{sg}, 1.0, -1.0
    s_mov_b32 s24, 0xffff0000
    """)
    loader_p3_addr()
    for sgm in range(4):
        for ii in range(4):
            r = XS + 32 * sgm + 8 * ii
            a.wait_vm(f"x{sgm}_{ii}")
            for q in range(4):
                a(f"""
                v_lshlrev_b32 v{t}, 16, v{r + q}
                v_lshlrev_b32 v{t + 1}, 16, v{r + 4 + q}
                v_and_b32 v{t + 2}, s24, v{r + q}
                v_and_b32 v{t + 3}, s24, v{r + 4 + q}
                v_fma_f32 v{t}, v{t + 1}, s{sg}, v{t}
                v_fma_f32 v{t + 2}, v{t + 3}, s{sg}, v{t + 2}
                v_cvt_pk_bf16_f32 v{r + q}, v{t}, v{t + 2}
                """)
            a(f"ds_write_b128 v{vd + (ii & 1)}, {vr(r, 4)} offset:{sgm * 16384 + ii * 1024}")
        if sgm == 2:
            sd.w_write()
        a("s_waitcnt lgkmcnt(0)\ns_barrier")
        if sgm == 0:
            stamp("L", 2)
    sd.w_store()
    sd.gate()
    for m in range(9):
        issue_B(m)
    stamp("L", 3)
    sd.signal()
    a(f"s_call_b64 {sr(sRET, 2)}, L_ggen")


fC, fS, fN = 0, 8, 16
fM = 24
fT1c, fT1s, fT2c, fT2s = 48, 56, 64, 72
fWr, fWi = 80, 88
fWraw, fXA = 96, 104
fD, fE = 112, 128
fFR = 144
fG = 96
sFX, sFW, sFY, sFL, sFZ = 76, 77, 78, 79, 80


def sub_fconst():
    a.label("L_fconst")
    n, q4, t = 150, 151, 152
    a(f"""
    v_and_b32 v{n}, 15, v{LANE}
    v_cvt_f32_u32 v{n}, v{n}
    v_lshrrev_b32 v{q4}, 4, v{LANE}
    v_lshlrev_b32 v{q4}, 2, v{q4}
    v_cvt_f32_u32 v{q4}, v{q4}
    s_lshl_b32 s15, s{sW4}, 4
    v_cvt_f32_u32 v{t + 10}, s15
    """)
    ar = 112

    def sincos(cnt, cdst, sdst):
        for j in range(cnt):
            a(f"v_cos_f32 v{cdst + j}, v{ar + j}")
        for j in range(cnt):
            a(f"v_sin_f32 v{sdst + j}, v{ar + j}")

    for aa in range(2):
        a(f"""
        v_add_f32 v{t}, {fb(16.0 * aa)}, v{n}
        v_mul_f32 v{t}, {fb(1 / 32)}, v{t}
        v_mul_f32 v{ar}, v{q4}, v{t}
        v_mul_f32 v{t + 1}, {fb(16.0)}, v{t}
        """)
        for j in range(1, 4):
            a(f"v_add_f32 v{ar + j}, v{ar + j - 1}, v{t}")
        for j in range(4):
            a(f"v_add_f32 v{ar + 4 + j}, v{ar + j}, v{t + 1}")
        sincos(8, ar + 8, ar + 16)
        for j in range(4):
            a(f"v_cvt_pk_bf16_f32 v{fC + 4 * aa + j}, v{ar + 8 + 2 * j}, v{ar + 9 + 2 * j}")
            a(f"v_cvt_pk_bf16_f32 v{fS + 4 * aa + j}, v{ar + 16 + 2 * j}, v{ar + 17 + 2 * j}")
            a(f"v_xor_b32 v{fN + 4 * aa + j}, 0x80008000, v{fS + 4 * aa + j}")
    a(f"""
    v_add_f32 v{t + 2}, v{t + 10}, v{n}
    v_mul_f32 v{t}, {fb(1 / 64)}, v{t + 2}
    v_mul_f32 v{t + 1}, {fb(16.0)}, v{t}
    v_mul_f32 v{ar}, v{q4}, v{t}
    """)
    for j in range(1, 4):
        a(f"v_add_f32 v{ar + j}, v{ar + j - 1}, v{t}")
    for wp in range(4):
        if wp:
            for j in range(4):
                a(f"v_add_f32 v{ar + j}, v{ar + j}, v{t + 1}")
        sincos(4, ar + 8, ar + 16)
        m = fM + 6 * wp
        for j in range(2):
            a(f"v_cvt_pk_bf16_f32 v{m + 2 + j}, v{ar + 8 + 2 * j}, v{ar + 9 + 2 * j}")
            a(f"v_cvt_pk_bf16_f32 v{m + 4 + j}, v{ar + 16 + 2 * j}, v{ar + 17 + 2 * j}")
            a(f"v_xor_b32 v{m + j}, 0x80008000, v{m + 4 + j}")
    a(f"v_add_f32 v{t + 3}, v{t + 10}, v{q4}")
    for aa in range(2):
        a(f"""
        v_add_f32 v{t}, {fb(16.0 * aa)}, v{n}
        v_mul_f32 v{t}, {fb(1 / 2048)}, v{t}
        v_mul_f32 v{ar + 4 * aa}, v{t + 3}, v{t}
        """)
        for j in range(1, 4):
            a(f"v_add_f32 v{ar + 4 * aa + j}, v{ar + 4 * aa + j - 1}, v{t}")
    sincos(8, fT1c, fT1s)
    a(f"""
    v_mul_f32 v{t}, {fb(1 / 2048)}, v{t + 2}
    v_mul_f32 v{t + 1}, {fb(16.0)}, v{t}
    v_mul_f32 v{ar}, v{q4}, v{t}
    """)
    for j in range(1, 4):
        a(f"v_add_f32 v{ar + j}, v{ar + j - 1}, v{t}")
    for j in range(4):
        a(f"v_add_f32 v{ar + 4 + j}, v{ar + j}, v{t + 1}")
    sincos(8, fT2c, fT2s)
    a(f"""
    v_and_b32 v{t}, 15, v{LANE}
    v_lshrrev_b32 v{t + 1}, 4, v{LANE}
    v_lshlrev_b32 v160, 8, v{t}
    v_lshl_add_u32 v160, v{t + 1}, 6, v160
    v_lshlrev_b32 v161, 4, v{LANE}
    v_add_u32 v163, s{sFL}, v161
    s_lshl_b32 s15, s{sW4}, 11
    v_add_u32 v162, s15, v163
    v_lshlrev_b32 v164, 6, v{t}
    v_lshl_add_u32 v164, v{t + 1}, 4, v164
    s_setpc_b64 {sr(sRET, 2)}
    """)


def fft_params(loader):
    if loader:
        a(f"""
        s_lshl_b32 s3, s{sW4}, 12
        s_add_u32 s{sFX}, s3, {X1 + 16}
        s_lshl_b32 s3, s{sW4}, 11
        s_add_u32 s{sFW}, s3, {WT + 256 * WT_K}
        s_lshl_b32 s3, s{sW4}, 10
        s_add_u32 s{sFY}, s3, {YO + Y_KC}
        s_mov_b32 s{sFL}, {EXCH2}
        s_mov_b32 s{sFZ}, 1
        """)
        return
    a(f"""
    s_and_b32 s13, s{sK}, 1
    s_lshl_b32 s13, s13, 6
    s_lshr_b32 s14, s{sK}, 2
    s_add_u32 s13, s13, s14
    s_mul_i32 s{sFX}, s13, {X1_CG}
    s_and_b32 s13, s{sK}, 2
    s_lshl_b32 s13, s13, 4
    s_add_u32 s{sFX}, s{sFX}, s13
    s_lshl_b32 s13, s{sW4}, 12
    s_add_u32 s{sFX}, s{sFX}, s13
    s_add_u32 s{sFX}, s{sFX}, {X1}
    s_mul_i32 s{sFW}, s{sK}, {WT_K}
    s_lshl_b32 s13, s{sW4}, 11
    s_add_u32 s{sFW}, s{sFW}, s13
    s_add_u32 s{sFW}, s{sFW}, {WT}
    s_mul_i32 s{sFY}, s{sK}, {2 * Y_KC}
    s_lshl_b32 s13, s{sW4}, 10
    s_add_u32 s{sFY}, s{sFY}, s13
    s_add_u32 s{sFY}, s{sFY}, {YO}
    s_mov_b32 s{sFL}, {EXCH}
    s_cmp_eq_u32 s{sK}, 0
    s_cselect_b32 s{sFZ}, 1, 0
    """)


def mf16(d, x, y, c):
    a(f"v_mfma_f32_16x16x32_bf16 {vr(d, 4)}, {vr(x, 4)}, {vr(y, 4)}, {c if c == '0' else vr(c, 4)}")


def mf32(d, x, y, c):
    a(f"v_mfma_f32_32x32x16_bf16 {vr(d, 16)}, {vr(x, 4)}, {vr(y, 4)}, {c if c == '0' else vr(c, 16)}")


def cmul(re, im, c, s, ore, oim, conj_w):
    p = lambda r: vr(r, 2)
    for h in (0, 2):
        a(f"v_pk_mul_f32 {p(ore + h)}, {p(re + h)}, {p(c + h)}")
        a(f"v_pk_mul_f32 {p(oim + h)}, {p(im + h)}, {p(c + h)}")
    for h in (0, 2):
        neg = "neg_lo:[1,0,0] neg_hi:[1,0,0]"
        a(f"v_pk_fma_f32 {p(ore + h)}, {p(im + h)}, {p(s + h)}, {p(ore + h)} {'' if conj_w else neg}")
        a(f"v_pk_fma_f32 {p(oim + h)}, {p(re + h)}, {p(s + h)}, {p(oim + h)} {neg if conj_w else ''}")


def sub_fft():
    a.label("L_fft")
    a.vm_reset()
    a(f"""
    buffer_load_dwordx4 {vr(fXA, 4)}, v160, {sr(S_WS, 4)}, s{sFX} offen sc1
    buffer_load_dwordx4 {vr(fXA + 4, 4)}, v160, {sr(S_WS, 4)}, s{sFX} offen offset:16 sc1
    """, "x1")
    a(f"""
    buffer_load_dwordx4 {vr(fWraw, 4)}, v161, {sr(S_WS, 4)}, s{sFW} offen sc1
    buffer_load_dwordx4 {vr(fWraw + 4, 4)}, v161, {sr(S_WS, 4)}, s{sFW} offen offset:1024 sc1
    """, "wt")
    a.wait_vm("x1")
    nz = a.newlabel("nz")
    a(f"s_cmp_eq_u32 s{sFZ}, 0\ns_cbranch_scc1 {nz}")
    for j in range(4):
        a(f"v_mov_b32 v{fXA + 4 + j}, 0")
    a.label(nz)
    a("s_nop 1")
    xre, xim = fXA, fXA + 4
    D = lambda aa, c: fD + 8 * aa + 4 * c
    E = lambda aa, c: fE + 8 * aa + 4 * c
    for aa in range(2):
        mf16(D(aa, 0), xre, fC + 4 * aa, "0")
        mf16(D(aa, 1), xim, fC + 4 * aa, "0")
        mf16(D(aa, 0), xim, fS + 4 * aa, D(aa, 0))
        mf16(D(aa, 1), xre, fN + 4 * aa, D(aa, 1))
    a.wait_vm("wt")
    for j in range(8):
        a(f"v_lshlrev_b32 v{fWr + j}, 16, v{fWraw + j}")
        a(f"v_and_b32 v{fWi + j}, 0xffff0000, v{fWraw + j}")

    def pack_exchange(ex, negim):
        for aa in range(2):
            n = "-" if negim else ""
            a(f"""
            v_cvt_pk_bf16_f32 v{fFR + 4 * aa}, v{E(aa, 0)}, v{E(aa, 0) + 1}
            v_cvt_pk_bf16_f32 v{fFR + 4 * aa + 1}, v{E(aa, 0) + 2}, v{E(aa, 0) + 3}
            v_cvt_pk_bf16_f32 v{fFR + 4 * aa + 2}, {n}v{E(aa, 1)}, {n}v{E(aa, 1) + 1}
            v_cvt_pk_bf16_f32 v{fFR + 4 * aa + 3}, {n}v{E(aa, 1) + 2}, {n}v{E(aa, 1) + 3}
            ds_write_b128 v162, {vr(fFR + 4 * aa, 4)} offset:{ex * 8192 + aa * 1024}
            """)
        a("s_waitcnt lgkmcnt(0)\ns_barrier")
        for f in range(8):
            a(f"ds_read_b128 {vr(fG + 4 * f, 4)}, v163 offset:{ex * 8192 + f * 1024}")

    for aa in range(2):
        cmul(D(aa, 0), D(aa, 1), fT1c + 4 * aa, fT1s + 4 * aa, E(aa, 0), E(aa, 1), True)
    pack_exchange(0, False)
    for wp in range(4):
        for aa in range(2):
            a(f"s_waitcnt lgkmcnt({7 - 2 * wp - aa})")
            mf16(E(aa, 0), fM + 6 * wp + 2, fG + 8 * wp + 4 * aa, "0" if wp == 0 else E(aa, 0))
            mf16(E(aa, 1), fM + 6 * wp, fG + 8 * wp + 4 * aa, "0" if wp == 0 else E(aa, 1))
    for aa in range(2):
        cmul(E(aa, 0), E(aa, 1), fWr + 4 * aa, fWi + 4 * aa, D(aa, 0), D(aa, 1), False)
    D, E = E, D
    pack_exchange(1, True)
    D, E = E, D
    for wp in range(4):
        for aa in range(2):
            a(f"s_waitcnt lgkmcnt({7 - 2 * wp - aa})")
            mf16(E(aa, 0), fG + 8 * wp + 4 * aa, fM + 6 * wp + 2, "0" if wp == 0 else E(aa, 0))
            mf16(E(aa, 1), fG + 8 * wp + 4 * aa, fM + 6 * wp, "0" if wp == 0 else E(aa, 1))
    for aa in range(2):
        cmul(E(aa, 0), E(aa, 1), fT2c + 4 * aa, fT2s + 4 * aa, D(aa, 0), D(aa, 1), True)
    for c in range(2):
        for aa in range(2):
            a(f"v_cvt_pk_bf16_f32 v{fFR + 4 * c + 2 * aa}, v{D(aa, c)}, v{D(aa, c) + 1}")
            a(f"v_cvt_pk_bf16_f32 v{fFR + 4 * c + 2 * aa + 1}, v{D(aa, c) + 2}, v{D(aa, c) + 3}")
    bre, bim = fFR, fFR + 4
    for mu in range(2):
        mf16(E(mu, 0), fC + 4 * mu, bre, "0")
    for mu in range(2):
        mf16(E(mu, 0), fS + 4 * mu, bim, E(mu, 0))
    for mu in range(2):
        mf16(E(mu, 1), fC + 4 * mu, bim, "0")
    for mu in range(2):
        mf16(E(mu, 1), fN + 4 * mu, bre, E(mu, 1))
    o = fD
    for mu in range(2):
        a(f"v_cvt_pk_bf16_f32 v{o + 2 * mu}, v{E(mu, 0)}, v{E(mu, 0) + 1}")
        a(f"v_cvt_pk_bf16_f32 v{o + 2 * mu + 1}, v{E(mu, 0) + 2}, v{E(mu, 0) + 3}")
    a(f"buffer_store_dwordx4 {vr(o, 4)}, v164, {sr(S_WS, 4)}, s{sFY} offen sc1")
    done = a.newlabel("fdone")
    a(f"s_cmp_lg_u32 s{sFZ}, 0\ns_cbranch_scc1 {done}")
    for mu in range(2):
        a(f"v_cvt_pk_bf16_f32 v{o + 4 + 2 * mu}, -v{E(mu, 1)}, -v{E(mu, 1) + 1}")
        a(f"v_cvt_pk_bf16_f32 v{o + 5 + 2 * mu}, -v{E(mu, 1) + 2}, -v{E(mu, 1) + 3}")
    a(f"s_add_u32 s3, s{sFY}, {Y_KC}")
    a(f"buffer_store_dwordx4 {vr(o + 4, 4)}, v164, {sr(S_WS, 4)}, s3 offen sc1")
    a.label(done)
    a(f"s_setpc_b64 {sr(sRET, 2)}")


def loader_common():
    a.label("L_load_common")
    a.vm_reset()
    nf, bx, nf2, after = (a.newlabel(s) for s in ("nf", "bx", "nf2", "afft"))
    a("v_mov_b32 v160, 0\nv_mov_b32 v161, 0\nv_mov_b32 v164, 0")
    a(f"s_cmp_lg_u32 s2, {FFT_WG}\ns_cbranch_scc1 {nf}")
    fft_params(True)
    a(f"s_call_b64 {sr(sRET, 2)}, L_fconst")
    a.label(nf)
    a(f"""
    s_cmp_lg_u32 s{sW4}, 0
    s_cbranch_scc1 {bx}
    s_lshr_b32 s13, s{sK}, 6
    s_cmp_eq_u32 s{sK}, 0
    s_cselect_b32 s14, 3, s13
    s_lshl_b32 s14, s14, 4
    s_sub_u32 s14, s14, 16
    s_and_b32 s15, s{sK}, 1
    s_lshl_b32 s15, s15, 2
    s_add_u32 s15, s15, s13
    s_add_u32 s15, s15, {LN_X1}
    s_lshl_b32 s13, s13, 4
    v_add_u32 v166, s13, v{LANE}
    v_add_u32 v167, s14, v{LANE}
    v_cmp_gt_u32 vcc, 16, v{LANE}
    v_cndmask_b32 v166, v167, v166, vcc
    v_mov_b32 v167, s15
    v_cmp_gt_u32 vcc, 32, v{LANE}
    v_cndmask_b32 v166, v167, v166, vcc
    v_lshlrev_b32 v166, 7, v166
    """)
    spin_until(166, 167, S_WS, 16)
    a.label(bx)
    stamp("L", 4)
    a(f"""
    s_barrier
    s_cmp_lg_u32 s2, {FFT_WG}
    s_cbranch_scc1 {nf2}
    s_call_b64 {sr(sRET, 2)}, L_fft
    s_branch {after}
    """)
    a.label(nf2)
    a("s_barrier\ns_barrier")
    a.label(after)
    stamp("L", 5)
    a(f"""
    s_lshl_b32 s13, s{sP}, 2
    s_add_u32 s13, s13, {LN_H}
    v_and_b32 v166, 3, v{LANE}
    v_add_u32 v166, s13, v166
    v_lshlrev_b32 v166, 7, v166
    s_add_u32 s13, s{sLDSW}, {BRING}
    v_add_u32 v168, s13, v{vLIN}
    v_add_u32 v169, 32768, v168
    """)
    spin_until(166, 167, S_WS, 7)
    stamp("L", 6)
    for n in range(7):
        issue_A(n)
    for n in range(36):
        tags = [f"A{n}"] + ([f"B{n}"] if 9 <= n < 28 else [])
        a.wait_vm(*tags, extra="lgkmcnt(0)" if n >= 22 else "")
        a("s_barrier")
        if n == 0:
            stamp("L", 7)
        m = n + 7
        if m < 36:
            issue_A(m)
            if 9 <= m < 28:
                issue_B(m)
            if m >= 28:
                off = (m % NSLOT) * 8192
                base, off = (168, off) if off < 32768 else (169, off - 32768)
                for wc in range(2):
                    a(f"ds_write_b128 v{base}, {vr(GP + 8 * (m - 28) + 4 * wc, 4)} offset:{off + wc * 1024}")
    stamp("L", 8)
    prof_store()
    a("s_endpgm")


def consumer_entry():
    a.label("L_cons")
    a.vm_reset()
    nz = a.newlabel("nzero")
    a(f"""
    s_waitcnt lgkmcnt(0)
    s_or_b32 s3, s2, s{sWAVE}
    s_cmp_lg_u32 s3, 0
    s_cbranch_scc1 {nz}
    v_lshlrev_b32 v2, 7, v{LANE}
    v_mov_b32 v3, 0
    s_mov_b32 s13, 8192
    s_mov_b32 s14, 16384
    s_mov_b32 s15, 24576
    buffer_store_dword v3, v2, {sr(S_WS, 4)}, 0 offen sc1
    buffer_store_dword v3, v2, {sr(S_WS, 4)}, s13 offen sc1
    buffer_store_dword v3, v2, {sr(S_WS, 4)}, s14 offen sc1
    buffer_store_dword v3, v2, {sr(S_WS, 4)}, s15 offen sc1
    v_mov_b32 v4, 1
    s_waitcnt vmcnt(0)
    s_mov_b64 exec, 1
    buffer_store_dword v4, v3, {sr(S_DBG, 4)}, 0 offen sc1
    s_mov_b64 exec, -1
    """)
    a.label(nz)
    a.vm_reset()
    a(f"s_cmp_ge_u32 s{sC}, 14\ns_cbranch_scc1 L_cons2")


def consumer1():
    ACC, BI, FR, ad, t = 0, 64, 96, 128, 136
    sWR, sWC = 22, 23
    a(f"""
    s_lshr_b32 s{sWR}, s{sW4}, 1
    s_and_b32 s{sWC}, s{sW4}, 1
    v_lshrrev_b32 v{t}, 5, v{LANE}
    v_lshlrev_b32 v{t + 1}, 3, v{t}
    s_lshl_b32 s13, s{sC}, 1
    s_add_u32 s13, s13, s{sWC}
    s_lshl_b32 s13, s13, 7
    """)
    for mt in range(2):
        for jj in range(4):
            a(f"buffer_load_dwordx2 {vr(FR + 8 * mt + 2 * jj, 2)}, v{t + 1}, {sr(S_B1, 4)}, s13 offen offset:{64 * mt + 16 * jj}", "bias")
    a(f"""
    v_and_b32 v{t + 1}, 31, v{LANE}
    v_bfe_u32 v{t + 2}, v{LANE}, 1, 3
    v_xor_b32 v{t + 2}, v{t + 2}, v{t}
    v_lshlrev_b32 v{t + 2}, 4, v{t + 2}
    v_lshl_add_u32 v{ad}, v{t + 1}, 7, v{t + 2}
    s_lshl_b32 s13, s{sWR}, 13
    v_add_u32 v{ad}, s13, v{ad}
    v_xor_b32 v{ad + 1}, 32, v{ad}
    v_xor_b32 v{ad + 2}, 64, v{ad}
    v_xor_b32 v{ad + 3}, 96, v{ad}
    v_bfe_u32 v{t + 1}, v{LANE}, 2, 2
    v_lshl_add_u32 v{t + 2}, v{t}, 3, v{t + 1}
    v_lshlrev_b32 v{t + 2}, 8, v{t + 2}
    s_lshl_b32 s13, s{sWC}, 1
    v_xor_b32 v{t + 1}, s13, v{t + 1}
    v_lshl_add_u32 v{t + 2}, v{t + 1}, 6, v{t + 2}
    v_bfe_u32 v{t + 1}, v{LANE}, 4, 1
    v_lshl_add_u32 v{t + 2}, v{t + 1}, 5, v{t + 2}
    v_and_b32 v{t + 1}, 3, v{LANE}
    v_lshl_add_u32 v{t + 2}, v{t + 1}, 3, v{t + 2}
    v_add_u32 v{ad + 4}, 16384, v{t + 2}
    v_xor_b32 v{ad + 5}, 64, v{ad + 4}
    """)
    a.wait_vm("bias")
    for i in range(16):
        a(f"v_lshlrev_b32 v{BI + 2 * i}, 16, v{FR + i}")
        a(f"v_and_b32 v{BI + 2 * i + 1}, 0xffff0000, v{FR + i}")
    acc = lambda mt, nt: ACC + 32 * mt + 16 * nt

    def reads(step):
        n, ks = divmod(step, 4)
        f = FR + 16 * (step & 1)
        off = (n & 1) * 32768
        return [f"ds_read_b128 {vr(f, 4)}, v{ad + ks} offset:{off}",
                f"ds_read_b64_tr_b16 {vr(f + 8, 2)}, v{ad + 4} offset:{off + ks * 4096}",
                f"ds_read_b64_tr_b16 {vr(f + 10, 2)}, v{ad + 4} offset:{off + ks * 4096 + 1024}",
                f"ds_read_b128 {vr(f + 4, 4)}, v{ad + ks} offset:{off + 4096}",
                f"ds_read_b64_tr_b16 {vr(f + 12, 2)}, v{ad + 5} offset:{off + ks * 4096}",
                f"ds_read_b64_tr_b16 {vr(f + 14, 2)}, v{ad + 5} offset:{off + ks * 4096 + 1024}"]

    def mfmas(step):
        f = FR + 16 * (step & 1)
        out = []
        for mt, nt in ((0, 0), (0, 1), (1, 0), (1, 1)):
            out.append((acc(mt, nt), f + 8 + 4 * mt, f + 4 * nt, BI + 16 * mt if step == 0 else acc(mt, nt)))
        return out

    stamp("C", 1)
    a("s_barrier")
    stamp("C", 2)
    for r in reads(0):
        a(r)
    for step in range(32):
        nxt = step + 1
        a("s_waitcnt lgkmcnt(0)")
        rd = []
        if nxt < 32:
            if nxt % 4 == 0:
                a("s_barrier")
                if nxt % 8 == 0:
                    for i in range(6):
                        a(f"v_xor_b32 v{ad + i}, 0x10000, v{ad + i}")
            rd = reads(nxt)
        ms = mfmas(step)
        for i, m in enumerate(ms):
            mf32(*m)
            for r in rd[3 * i:3 * i + 3]:
                a(r)
    stamp("C", 3)
    rdy, zero, lin, T, O = 171, 141, 142, 144, 64
    c = math.sqrt(2 / math.pi)
    c1 = -2 * c * math.log2(math.e)
    a(f"""
    v_mov_b32 v{zero}, 0
    v_lshlrev_b32 v{lin}, 4, v{LANE}
    s_mov_b32 s16, {fb(c1 * 0.044715)}
    s_mov_b32 s17, s16
    v_mov_b32 v160, {fb(c1)}
    v_mov_b32 v161, {fb(c1)}
    s_lshl_b32 s13, s{sB}, 1
    s_add_u32 s13, s13, s{sWR}
    s_mul_i32 s14, s13, {H_P}
    s_lshl_b32 s15, s{sC}, 1
    s_add_u32 s15, s15, s{sWC}
    s_lshl_b32 s19, s15, 13
    s_add_u32 s14, s14, s19
    s_add_u32 s14, s14, {HO}
    s_add_u32 s18, s14, 4096
    s_lshl_b32 s13, s13, 2
    s_and_b32 s15, s15, 3
    s_add_u32 s13, s13, s15
    s_add_u32 s13, s13, {LN_H}
    """)
    ready_load(rdy, zero)
    for ti, (mt, nt) in enumerate(((0, 0), (0, 1), (1, 0), (1, 1))):
        x0 = acc(mt, nt)
        P = lambda r: vr(r, 2)
        for h in range(0, 16, 2):
            a(f"v_pk_mul_f32 {P(T + h)}, {P(x0 + h)}, {P(x0 + h)}")
        for h in range(0, 16, 2):
            a(f"v_pk_fma_f32 {P(T + h)}, {P(T + h)}, s[16:17], v[160:161]")
        for h in range(0, 16, 2):
            a(f"v_pk_mul_f32 {P(T + h)}, {P(T + h)}, {P(x0 + h)}")
        for h in range(16):
            a(f"v_exp_f32 v{T + h}, v{T + h}")
        for h in range(0, 16, 2):
            a(f"v_pk_add_f32 {P(T + h)}, {P(T + h)}, 1.0 op_sel_hi:[1,0]")
        for h in range(16):
            a(f"v_rcp_f32 v{T + h}, v{T + h}")
        for h in range(0, 16, 2):
            a(f"v_pk_mul_f32 {P(T + h)}, {P(T + h)}, {P(x0 + h)}")
        o = O + 8 * ti
        for h in range(8):
            a(f"v_cvt_pk_bf16_f32 v{o + h}, v{T + 2 * h}, v{T + 2 * h + 1}")
        for tp in range(2):
            a(f"buffer_store_dwordx4 {vr(o + 4 * tp, 4)}, v{lin}, {sr(S_WS, 4)}, s{14 if mt == 0 else 18} offen offset:{tp * 2048 + nt * 1024} sc1", "h")
    stamp("C", 4)
    a("s_mov_b32 s81, s13\ns_branch L_cons_common")


def consumer2():
    a.label("L_cons2")
    a.vm_reset()
    ACC, AF, ST, BF, ad, t = 0, 128, 176, 208, 224, 228
    mu = 236
    acc = lambda rt, ct: ACC + 32 * rt + 16 * ct
    a(f"""
    v_lshrrev_b32 v{t}, 5, v{LANE}
    v_and_b32 v{t + 1}, 31, v{LANE}
    v_bfe_u32 v{t + 2}, v{LANE}, 1, 3
    v_xor_b32 v{t + 2}, v{t + 2}, v{t}
    v_lshlrev_b32 v{t + 2}, 4, v{t + 2}
    v_lshl_add_u32 v{ad}, v{t + 1}, 7, v{t + 2}
    v_add_u32 v{ad}, {UV}, v{ad}
    v_xor_b32 v{ad + 1}, 32, v{ad}
    v_xor_b32 v{ad + 2}, 64, v{ad}
    v_xor_b32 v{ad + 3}, 96, v{ad}
    v_lshlrev_b32 v{t}, 3, v{t}
    v_cvt_f32_u32 v{t}, v{t}
    s_lshl_b32 s13, s{sW4}, 6
    s_sub_u32 s14, s{sC}, 14
    s_lshl_b32 s15, s14, 10
    s_add_u32 s15, s15, s13
    """)
    for ct in range(2):
        c0, c1 = ST + 16 * ct, ST + 16 * ct + 8
        kf, ph, a16 = t + 3, t + 4, t + 5
        a(f"""
        v_add_u32 v{t + 2}, s13, v{t + 1}
        v_and_b32 v{ph}, 1, v{t + 2}
        v_and_b32 v{kf}, 0xfffe, v{t + 2}
        v_add_u32 v{kf}, s14, v{kf}
        v_add_u32 v{t + 2}, s15, v{t + 1}
        v_cmp_eq_u32 vcc, 1, v{t + 2}
        v_mov_b32 v{t + 2}, 0x100
        v_cndmask_b32 v{kf}, v{kf}, v{t + 2}, vcc
        v_cndmask_b32 v{ph}, v{ph}, 0, vcc
        v_cvt_f32_u32 v{kf}, v{kf}
        v_cvt_f32_u32 v{ph}, v{ph}
        v_mul_f32 v{kf}, {fb(1 / 512)}, v{kf}
        v_mul_f32 v{ph}, {fb(0.25)}, v{ph}
        v_mul_f32 v{a16}, {fb(16.0)}, v{kf}
        v_cos_f32 v{mu + ct}, v{a16}
        v_fma_f32 v{c0}, v{t}, v{kf}, v{ph}
        v_add_f32 v{mu + ct}, v{mu + ct}, v{mu + ct}
        s_add_u32 s13, s13, 32
        s_add_u32 s15, s15, 32
        """)
        for j in range(1, 8):
            a(f"v_add_f32 v{c0 + j}, v{c0 + j - 1}, v{kf}")
        for j in range(8):
            a(f"v_add_f32 v{c1 + j}, v{c0 + j}, v{a16}")
        for j in range(16):
            a(f"v_cos_f32 v{c0 + j}, v{c0 + j}")

    def gen(tau):
        out = []
        for ct in range(2):
            cur = ST + 16 * ct + 8 * (tau & 1)
            oth = ST + 16 * ct + 8 * (1 - (tau & 1))
            if tau >= 2:
                out += [f"v_fma_f32 v{cur + j}, v{mu + ct}, v{oth + j}, -v{cur + j}" for j in range(8)]
            out += [f"v_cvt_pk_bf16_f32 v{BF + 8 * (tau & 1) + 4 * ct + j}, v{cur + 2 * j}, v{cur + 2 * j + 1}" for j in range(4)]
        return out

    def reads(step):
        n, ks = divmod(step, 4)
        f = AF + 16 * (step & 1)
        return [f"ds_read_b128 {vr(f + 4 * rt, 4)}, v{ad + ks} offset:{n * 16384 + rt * 4096}" for rt in range(4)]

    for g in gen(0):
        a(g)
    stamp("C", 1)
    a("s_barrier")
    stamp("C", 2)
    for r in reads(0):
        a(r)
    for step in range(16):
        nxt = step + 1
        a("s_waitcnt lgkmcnt(0)")
        fill = []
        if nxt < 16:
            if nxt % 4 == 0:
                a("s_barrier")
            fill = reads(nxt) + gen(nxt)
        per = -(-len(fill) // 7)
        i = 0
        for rt in range(4):
            for ct in range(2):
                mf32(acc(rt, ct), AF + 16 * (step & 1) + 4 * rt, BF + 8 * (step & 1) + 4 * ct, "0" if step == 0 else acc(rt, ct))
                for f in fill[i * per:(i + 1) * per]:
                    a(f)
                i += 1
    stamp("C", 3)
    zero, va, O = 172, 173, 128
    a(f"""
    v_mov_b32 v{zero}, 0
    v_bfe_u32 v{t}, v{LANE}, 2, 3
    v_mul_u32_u24 v{t}, {X1_CG}, v{t}
    v_lshrrev_b32 v{t + 1}, 5, v{LANE}
    v_lshl_add_u32 v{t}, v{t + 1}, 6, v{t}
    v_and_b32 v{t + 1}, 3, v{LANE}
    v_lshl_add_u32 v{va}, v{t + 1}, 4, v{t}
    s_lshl_b32 s13, s14, 2
    s_add_u32 s13, s13, s{sW4}
    s_add_u32 s81, s13, {LN_X1}
    s_mul_i32 s13, s13, {16 * X1_CG}
    s_lshl_b32 s15, s{sB}, 10
    s_add_u32 s13, s13, s15
    s_add_u32 s13, s13, {X1}
    s_add_u32 s15, s13, {8 * X1_CG}
    """)
    ready_load(171, zero)
    i = 0
    for rt in range(4):
        for ct in range(2):
            o = O + 8 * (i % 4)
            i += 1
            for h in range(8):
                a(f"v_cvt_pk_bf16_f32 v{o + h}, v{acc(rt, ct) + 2 * h}, v{acc(rt, ct) + 2 * h + 1}")
            for tp in range(2):
                a(f"buffer_store_dwordx4 {vr(o + 4 * tp, 4)}, v{va}, {sr(S_WS, 4)}, s{13 if ct == 0 else 15} offen offset:{rt * 256 + tp * 128} sc1", "x1")
    stamp("C", 4)
    a.wait_vm_all()
    ready_check(171, zero)
    signal(81, 172, 173)
    a("s_mov_b32 s81, -1")


def consumer_common():
    a.label("L_cons_common")
    a.vm_reset()
    AB, AA, FR = 176, 192, 0
    vA, vW, vY, vG, vO, vGv, vP, zero = 208, 210, 212, 214, 216, 217, 218, 172
    sWR, sWC = 22, 23
    t = 220
    a(f"""
    s_lshr_b32 s{sWR}, s{sW4}, 1
    s_and_b32 s{sWC}, s{sW4}, 1
    v_lshrrev_b32 v{t}, 5, v{LANE}
    v_lshlrev_b32 v{t + 1}, 3, v{t}
    s_lshl_b32 s13, s{sT}, 1
    s_add_u32 s13, s13, s{sWC}
    s_lshl_b32 s13, s13, 6
    """)
    for jj in range(4):
        a(f"buffer_load_dwordx2 {vr(t + 8 + 2 * jj, 2)}, v{t + 1}, {sr(S_B2, 4)}, s13 offen offset:{16 * jj}", "b2")
    fft_params(False)
    a(f"s_call_b64 {sr(sRET, 2)}, L_fconst")
    a(f"""
    v_lshlrev_b32 v{t + 1}, 4, v{LANE}
    s_lshl_b32 s13, s{sWR}, 10
    s_add_u32 s13, s13, {ARING}
    v_add_u32 v{vA}, s13, v{t + 1}
    v_add_u32 v{vA + 1}, 32768, v{vA}
    s_lshl_b32 s13, s{sWC}, 10
    s_add_u32 s13, s13, {BRING}
    v_add_u32 v{vG}, s13, v{t + 1}
    v_add_u32 v{vG + 1}, 32768, v{vG}
    v_bfe_u32 v{t + 1}, v{LANE}, 2, 2
    v_bfe_u32 v{t + 2}, v{LANE}, 4, 1
    v_lshlrev_b32 v{t + 2}, 5, v{t + 2}
    v_lshl_add_u32 v{t + 2}, v{t + 1}, 7, v{t + 2}
    v_and_b32 v{t + 3}, 3, v{LANE}
    v_lshl_add_u32 v{t + 2}, v{t + 3}, 3, v{t + 2}
    v_lshrrev_b32 v{t + 1}, 1, v{t + 1}
    v_xor_b32 v{t + 3}, s{sWC}, v{t + 1}
    v_lshl_add_u32 v{t + 3}, v{t + 3}, 6, v{t + 2}
    v_lshl_add_u32 v{vW}, v{t}, 9, v{t + 3}
    v_add_u32 v{vW}, {BRING}, v{vW}
    v_add_u32 v{vW + 1}, 32768, v{vW}
    v_xor_b32 v{t + 3}, s{sWR}, v{t + 1}
    v_lshl_add_u32 v{t + 3}, v{t + 3}, 6, v{t + 2}
    v_lshl_add_u32 v{vY}, v{t}, 10, v{t + 3}
    v_add_u32 v{vY}, {ARING}, v{vY}
    v_add_u32 v{vY + 1}, 32768, v{vY}
    v_bfe_u32 v{t + 1}, v{LANE}, 2, 1
    v_lshlrev_b32 v{t + 1}, 4, v{t + 1}
    v_bfe_u32 v{t + 2}, v{LANE}, 3, 2
    v_lshl_add_u32 v{t + 1}, v{t + 2}, 2, v{t + 1}
    v_and_b32 v{t + 2}, 3, v{LANE}
    v_add_u32 v{t + 1}, v{t + 1}, v{t + 2}
    v_lshlrev_b32 v{t + 1}, 16, v{t + 1}
    v_lshl_add_u32 v{vO}, v{t}, 4, v{t + 1}
    v_and_b32 v{vP}, 15, v{LANE}
    v_add_u32 v{vP}, {LN_Y}, v{vP}
    v_lshlrev_b32 v{vP}, 7, v{vP}
    v_mov_b32 v{zero}, 0
    """)
    a.wait_vm_all()
    for i in range(8):
        a(f"v_lshlrev_b32 v{AB + 2 * i}, 16, v{t + 8 + i}")
        a(f"v_and_b32 v{AB + 2 * i + 1}, 0xffff0000, v{t + 8 + i}")
    nosig = a.newlabel("nosig")
    a(f"s_cmp_eq_u32 s81, -1\ns_cbranch_scc1 {nosig}")
    ready_check(171, zero)
    signal(81, 173, 174)
    a.label(nosig)
    stamp("C", 5)
    a("s_barrier")
    stamp("C", 6)
    a(f"s_call_b64 {sr(sRET, 2)}, L_fft")
    stamp("C", 7)
    a.vm_reset()

    def reads(n, u):
        f = FR + 32 * (n & 1) + 8 * u
        off = (n % NSLOT) * 8192
        hi, off = (0, off) if off < 32768 else (1, off - 32768)
        off += u * 2048
        if n < 28:
            return [f"ds_read_b64_tr_b16 {vr(f, 2)}, v{vW + hi} offset:{off}",
                    f"ds_read_b64_tr_b16 {vr(f + 2, 2)}, v{vW + hi} offset:{off + 1024}",
                    f"ds_read_b128 {vr(f + 4, 4)}, v{vA + hi} offset:{off}"]
        return [f"ds_read_b128 {vr(f, 4)}, v{vG + hi} offset:{off}",
                f"ds_read_b64_tr_b16 {vr(f + 4, 2)}, v{vY + hi} offset:{off}",
                f"ds_read_b64_tr_b16 {vr(f + 6, 2)}, v{vY + hi} offset:{off + 512}"]

    def mfma(n, u):
        f = FR + 32 * (n & 1) + 8 * u
        acc = AB if n < 28 else AA
        mf32(acc, f, f + 4, "0" if (n, u) == (28, 0) else acc)

    YDRAIN, YPOLL, YNEED = 9, 17, 21
    for n in range(37):
        if n == YDRAIN:
            a.wait_vm_all()
        if n == YNEED:
            ok = a.newlabel("yok")
            a.wait_vm_all()
            a(f"v_cmp_ne_u32 vcc, 16, v{t}\ns_cbranch_vccz {ok} ; safe")
            spin_until(vP, t, S_WS, 16)
            a.label(ok)
        if n < 36:
            a("s_barrier")
        if n == 0:
            stamp("C", 8)
        if n == YDRAIN:
            ns = a.newlabel("nys")
            a(f"""
            s_cmp_lg_u32 s{sW4}, 0
            s_cbranch_scc1 {ns} ; safe
            s_and_b32 s13, s2, 15
            s_add_u32 s13, s13, {LN_Y}
            """)
            signal(13, 173, 174)
            a.label(ns)
            a.vm_reset()
        if n == YPOLL:
            a(f"buffer_load_dword v{t}, v{vP}, {sr(S_WS, 4)}, 0 offen sc1")
        if n == YNEED:
            a(f"""
            s_lshl_b32 s13, s{sP}, 1
            s_add_u32 s13, s13, s{sWR}
            s_lshl_b32 s14, s13, 7
            s_add_u32 s14, s14, {GATE}
            v_and_b32 v{t + 1}, 31, v{LANE}
            v_lshlrev_b32 v{t + 1}, 2, v{t + 1}
            buffer_load_dword v{vGv}, v{t + 1}, {sr(S_WS, 4)}, s14 offen sc1
            s_lshl_b32 s13, s13, 10
            s_lshl_b32 s14, s{sT}, 1
            s_add_u32 s14, s14, s{sWC}
            s_lshl_b32 s14, s14, 6
            s_add_u32 s13, s13, s14
            """)
        for u in range(4):
            if n < 36:
                for r in reads(n, u):
                    a(r)
            if n >= 1:
                a(f"s_waitcnt lgkmcnt({12 if n < 36 else 9 - 3 * u})")
                mfma(n - 1, u)
    a.wait_vm_all()
    a(f"""
    v_sub_f32 v{t}, 1.0, v{vGv}
    v_mul_f32 v{t + 2}, {fb(2.0 ** -19)}, v{vGv}
    """)
    for h in range(0, 16, 2):
        a(f"v_pk_mul_f32 {vr(AB + h, 2)}, {vr(AB + h, 2)}, {vr(t, 2)} op_sel_hi:[1,0]")
    for h in range(0, 16, 2):
        a(f"v_pk_fma_f32 {vr(AB + h, 2)}, {vr(AA + h, 2)}, {vr(t + 2, 2)}, {vr(AB + h, 2)} op_sel_hi:[1,0,1]")
    for h in range(8):
        a(f"v_cvt_pk_bf16_f32 v{FR + h}, v{AB + 2 * h}, v{AB + 2 * h + 1}")
    for J in range(2):
        a(f"v_permlane32_swap_b32 v{FR + 4 * J}, v{FR + 4 * J + 2}")
        a(f"v_permlane32_swap_b32 v{FR + 4 * J + 1}, v{FR + 4 * J + 3}")
    for J in range(2):
        a(f"buffer_store_dwordx4 {vr(FR + 4 * J, 4)}, v{vO}, {sr(S_OUT, 4)}, s13 offen offset:{32 * J}")
    if PROF:
        a("s_waitcnt vmcnt(0)")
    stamp("C", 9)
    prof_store()
    a.label("L_end")
    a("s_endpgm")


def main():
    entry()
    loader1()
    loader2()
    loader_common()
    sub_ggen()
    consumer_entry()
    consumer1()
    consumer2()
    consumer_common()
    sub_fconst()
    sub_fft()
    head = open("gated_mix__spectral_gfnet__dense_activation_gelu__prompt.s.ref").read().split("; Override")[0]
    txt = head + f"""; @launch grid=(256,1,1) block=(512,1,1) lds=163840
; One persistent launch. Waves 0-3 compute, waves 4-7 load. Phases: [x w1 -> gelu | row DFT] -> column FFT * W * inverse
; FFT -> [h w2 + inverse row DFT] -> gated mix. Workgroups hand data over through d_ws with counters (cleared by
; workgroup 0, announced in d_debug word 0). Generated by gen/gen.py.
.amdgcn_target "amdgcn-amd-amdhsa--gfx950"
.text
.globl {NAME}
.p2align 8
.type {NAME},@function
{NAME}:
""" + a.finish() + f""".section .rodata,"a"
.p2align 6
.amdhsa_kernel {NAME}
  .amdhsa_next_free_vgpr 256
  .amdhsa_next_free_sgpr 102
  .amdhsa_accum_offset 256
  .amdhsa_group_segment_fixed_size 0
  .amdhsa_kernarg_size 96
  .amdhsa_user_sgpr_count 2
  .amdhsa_user_sgpr_kernarg_segment_ptr 1
  .amdhsa_system_sgpr_workgroup_id_x 1
  .amdhsa_float_denorm_mode_32 3
.end_amdhsa_kernel
"""
    out = [x for x in sys.argv[1:] if not x.startswith("--")][0]
    open(out, "w").write(txt)


main()
```

```python
import math
import struct
import sys
from asmlib import Asm, vr, sr

NAME = "gated_mix__spectral_gfnet__dense_activation_gelu__prompt_kernel"
PROF = "--prof" in sys.argv


def fb(x):
    return "0x%08x" % struct.unpack("<I", struct.pack("<f", x))[0]


SYNC, GATE, WT, X1, YO, HO, TS = 0, 0x8000, 0x10000, 0x300000, 0x600000, 0x900000, 0x1100000
DUMMY = 0x1200000
WT_K, X1_CG, Y_KC, H_P = 8320, 16640, 4224, 229376
LN_WT, LN_X1, LN_Y, LN_H = 0, 64, 72, 128
WS_BYTES = 0x1200000
NA, NB = 6, 12
BRING, ARING, EXCH = 0, NB * 8192, 147456
UV = 81920
EXCH2 = ARING + (NA - 2) * 8192
S_X, S_WR, S_WI, S_W1, S_B1, S_W2, S_B2, S_GW, S_OUT, S_DBG, S_WS = range(28, 72, 4)
sWAVE, sW4, sXC, sJ, sB, sC, sP, sT, sK = 4, 5, 6, 7, 8, 9, 10, 11, 12
sCB = 25
sRET = 26
sTS = 82
LANE = 170
FFT_WG = 56
SPIN_MAX = 200000

a = Asm()
nstamp = {}


SETS = {}
for arg in sys.argv[1:]:
    if arg.startswith(("--C=", "--L=")):
        SETS[arg[2]] = arg[4:].split(",")


def stamp(role, name):
    if not PROF:
        return
    if role == "all":
        for i in range(10):
            a(f"s_mov_b32 s{sTS + 2 * i}, 0")
        a(f"s_memtime {sr(sTS, 2)}")
        return
    names = SETS.get(role, [str(i) for i in range(1, 10)])
    if str(name) in names:
        a(f"s_memtime {sr(sTS + 2 * (1 + names.index(str(name))), 2)}")


def prof_store():
    if not PROF:
        return
    a("s_waitcnt lgkmcnt(0)")
    for i in range(10):
        a(f"v_mov_b32 v{i}, s{sTS + 2 * i}")
    a(f"""
    s_lshl_b32 s13, s2, 3
    s_add_u32 s13, s13, s{sWAVE}
    s_lshl_b32 s13, s13, 6
    s_add_u32 s13, s13, {TS}
    v_mov_b32 v12, 0
    s_mov_b64 exec, 1
    buffer_store_dwordx4 v[0:3], v12, {sr(S_WS, 4)}, s13 offen
    buffer_store_dwordx4 v[4:7], v12, {sr(S_WS, 4)}, s13 offen offset:16
    buffer_store_dwordx2 v[8:9], v12, {sr(S_WS, 4)}, s13 offen offset:32
    """)


def spin_until(vaddr, vtmp, srd, expect, soff="0"):
    top, out = a.newlabel("spin"), a.newlabel("spun")
    a("s_mov_b32 s3, 0")
    a.label(top)
    a(f"""
    buffer_load_dword v{vtmp}, v{vaddr}, {sr(srd, 4)}, {soff} offen sc1
    s_add_u32 s3, s3, 1
    s_cmp_gt_u32 s3, {SPIN_MAX}
    s_cbranch_scc1 {out}
    s_waitcnt vmcnt(0)
    v_cmp_ne_u32 vcc, {expect}, v{vtmp}
    s_cbranch_vccnz {top}
    """)
    a.label(out)
    a.wait_vm_all()


def ready_load(v, vzero):
    a(f"buffer_load_dword v{v}, v{vzero}, {sr(S_DBG, 4)}, 0 offen sc1", "rdy")


def ready_check(v, vzero):
    ok = a.newlabel("rdy")
    a(f"""
    v_cmp_ne_u32 vcc, 1, v{v}
    s_cbranch_vccz {ok}
    """)
    keep = list(a.vm)
    spin_until(vzero, v, S_DBG, 1)
    a.vm = keep
    a.label(ok)


def signal(sline, v0, v1):
    a(f"""
    s_lshl_b32 s3, s{sline}, 7
    v_mov_b32 v{v0}, 0
    v_mov_b32 v{v1}, 1
    s_mov_b64 exec, 1
    buffer_atomic_add v{v1}, v{v0}, {sr(S_WS, 4)}, s3 offen
    s_mov_b64 exec, -1
    """, "sig")


SRDS = ((S_X, 0, 2097152), (S_W1, 32, 1835008), (S_WS, 88, WS_BYTES), (S_WR, 8, 1052672), (S_WI, 16, 1052672),
        (S_B1, 40, 3584), (S_W2, 48, 1835008), (S_B2, 56, 1024), (S_GW, 64, 1024), (S_OUT, 72, 2097152), (S_DBG, 80, 256))


def entry():
    a(f"""
    s_cmp_ge_u32 s2, 256
    s_cbranch_scc1 L_end
    """)
    stamp("all", 0)
    for srd, off, n in SRDS:
        a(f"s_load_dwordx2 {sr(srd, 2)}, s[0:1], {off}")
    a(f"""
    v_lshrrev_b32 v1, 6, v0
    v_and_b32 v{LANE}, 63, v0
    v_readfirstlane_b32 s{sWAVE}, v1
    s_and_b32 s{sXC}, s2, 7
    s_lshr_b32 s{sJ}, s2, 3
    s_lshr_b32 s3, s{sJ}, 3
    s_lshr_b32 s{sB}, s{sXC}, 1
    s_lshl_b32 s{sB}, s{sB}, 2
    s_add_u32 s{sB}, s{sB}, s3
    s_lshl_b32 s{sP}, s{sXC}, 2
    s_add_u32 s{sP}, s{sP}, s3
    s_and_b32 s{sT}, s{sJ}, 7
    s_and_b32 s3, s2, 1
    s_mul_i32 s{sCB}, s3, 7
    s_add_u32 s{sCB}, s{sCB}, s{sT}
    s_add_u32 s{sC}, s{sCB}, s3
    s_and_b32 s{sW4}, s{sWAVE}, 3
    s_xor_b32 s{sK}, s2, {FFT_WG}
    """)
    for srd, off, n in SRDS[:2]:
        a(f"s_mov_b32 s{srd + 2}, {n}\ns_mov_b32 s{srd + 3}, 0x20000")
    a(f"""
    s_cmp_lt_u32 s{sWAVE}, 4
    s_cbranch_scc1 L_cons
    s_cmp_eq_u32 s{sT}, 7
    s_cbranch_scc1 L_load2
    """)


def rest_srds():
    for srd, off, n in SRDS[2:]:
        a(f"s_mov_b32 s{srd + 2}, {n}\ns_mov_b32 s{srd + 3}, 0x20000")


class Side:
    def __init__(self, base):
        self.wr = base
        self.wi = base + 8
        self.c = base + 16
        self.gx = base + 18
        self.gw = base + 26
        self.t = base + 30
        self.rdy = base + 38
        self.zero = base + 39

    def issue(self):
        t = self.t
        a(f"""
        s_lshr_b32 s13, s{sJ}, 2
        s_lshl_b32 s13, s13, 3
        s_add_u32 s13, s13, s{sXC}
        s_and_b32 s14, s{sJ}, 3
        s_lshr_b32 s15, s13, 4
        s_lshl_b32 s15, s15, 9
        s_bfe_u32 s16, s13, 0x20001
        s_lshl_b32 s16, s16, 7
        s_add_u32 s15, s15, s16
        s_bfe_u32 s16, s13, 0x10003
        s_lshl_b32 s16, s16, 4
        s_add_u32 s15, s15, s16
        s_and_b32 s16, s13, 1
        s_lshl_b32 s16, s16, 3
        s_add_u32 s15, s15, s16
        s_lshl_b32 s16, s{sW4}, 1
        s_add_u32 s15, s15, s16
        s_mul_i32 s19, s15, 514
        s_lshl_b32 s16, s14, 7
        s_add_u32 s15, s19, s16
        s_add_u32 s16, s15, 16448
        s_add_u32 s17, s16, 16448
        s_add_u32 s18, s17, 16448
        s_cmp_eq_u32 s14, 3
        s_cselect_b32 s19, s19, 0x200000
        v_lshlrev_b32 v{t}, 1, v{LANE}
        v_lshlrev_b32 v{t + 1}, 4, v{LANE}
        v_bfe_u32 v{t + 2}, v{LANE}, 2, 1
        v_mul_u32_u24 v{t + 2}, 514, v{t + 2}
        v_and_b32 v{t + 3}, 3, v{LANE}
        v_mul_u32_u24 v{t + 3}, 16448, v{t + 3}
        v_add3_u32 v{t + 2}, v{t + 2}, v{t + 3}, 64
        v_mov_b32 v{self.zero}, 0
        s_lshr_b32 s20, s{sW4}, 1
        s_lshl_b32 s20, s20, 4
        s_and_b32 s21, s{sC}, 3
        s_lshl_b32 s21, s21, 2
        s_add_u32 s20, s20, s21
        s_and_b32 s21, s{sW4}, 1
        s_lshl_b32 s21, s21, 1
        s_add_u32 s20, s20, s21
        s_lshl_b32 s20, s20, 6
        s_lshl_b32 s21, s{sB}, 2
        s_add_u32 s20, s20, s21
        s_lshr_b32 s21, s{sC}, 2
        s_add_u32 s20, s20, s21
        s_lshl_b32 s20, s20, 10
        s_add_u32 s21, s20, 65536
        """)
        a(f"""
        buffer_load_dwordx4 {vr(self.gx, 4)}, v{t + 1}, {sr(S_X, 4)}, s20 offen
        buffer_load_dwordx4 {vr(self.gx + 4, 4)}, v{t + 1}, {sr(S_X, 4)}, s21 offen
        buffer_load_dwordx4 {vr(self.gw, 4)}, v{t + 1}, {sr(S_GW, 4)}, 0 offen
        """, "side")
        for be in range(2):
            for i in range(4):
                a(f"buffer_load_ushort v{self.wr + 4 * be + i}, v{t}, {sr(S_WR, 4)}, s{15 + i} offen offset:{514 * be}", "side")
                a(f"buffer_load_ushort v{self.wi + 4 * be + i}, v{t}, {sr(S_WI, 4)}, s{15 + i} offen offset:{514 * be}", "side")
        a(f"""
        buffer_load_ushort v{self.c}, v{t + 2}, {sr(S_WR, 4)}, s19 offen offset:448
        buffer_load_ushort v{self.c + 1}, v{t + 2}, {sr(S_WI, 4)}, s19 offen offset:448
        """, "side")

    def w_write(self):
        t = self.t
        a.wait_vm("side")
        for i in range(8):
            a(f"v_lshl_or_b32 v{self.wr + i}, v{self.wi + i}, 16, v{self.wr + i}")
        a(f"""
        v_lshl_or_b32 v{self.c}, v{self.c + 1}, 16, v{self.c}
        s_lshl_b32 s15, s{sW4}, 1
        v_and_b32 v{t}, 7, v{LANE}
        v_xor_b32 v{t}, s15, v{t}
        v_lshlrev_b32 v{t}, 4, v{t}
        v_lshl_add_u32 v{t}, v{LANE}, 7, v{t}
        v_add_u32 v{t}, {EXCH}, v{t}
        v_xor_b32 v{t + 1}, 16, v{t}
        ds_write_b128 v{t}, {vr(self.wr, 4)}
        ds_write_b128 v{t + 1}, {vr(self.wr + 4, 4)}
        s_lshl_b32 s15, s13, 7
        s_lshl_b32 s16, s{sW4}, 5
        s_add_u32 s15, s15, s16
        s_add_u32 s15, s15, {WT + 256 * WT_K}
        s_cmp_eq_u32 s14, 3
        s_cselect_b32 s15, s15, {DUMMY}
        v_lshlrev_b32 v{t + 2}, 2, v{LANE}
        s_mov_b64 exec, 0xff
        """)
        a(f"buffer_store_dword v{self.c}, v{t + 2}, {sr(S_WS, 4)}, s15 offen sc1", "wst")
        a("s_mov_b64 exec, -1\ns_waitcnt lgkmcnt(0)")

    def w_store(self):
        t = self.t
        a(f"""
        s_lshl_b32 s15, s{sW4}, 11
        s_add_u32 s15, s15, {EXCH}
        v_lshl_add_u32 v{t}, v{LANE}, 4, s15
        ds_read_b128 {vr(self.wr, 4)}, v{t}
        ds_read_b128 {vr(self.wr + 4, 4)}, v{t} offset:1024
        v_lshrrev_b32 v{t + 1}, 3, v{LANE}
        v_and_b32 v{t + 2}, 7, v{LANE}
        v_xor_b32 v{t + 2}, v{t + 2}, v{t + 1}
        v_mul_u32_u24 v{t + 1}, {WT_K}, v{t + 1}
        v_lshl_add_u32 v{t + 1}, v{t + 2}, 4, v{t + 1}
        s_lshl_b32 s15, s14, 2
        s_add_u32 s15, s15, s{sW4}
        s_mul_i32 s15, s15, {16 * WT_K}
        s_lshl_b32 s16, s13, 7
        s_add_u32 s15, s15, s16
        s_add_u32 s15, s15, {WT}
        s_add_u32 s16, s15, {8 * WT_K}
        """)
        ready_load(self.rdy, self.zero)
        a("s_waitcnt lgkmcnt(0)")
        a(f"""
        buffer_store_dwordx4 {vr(self.wr, 4)}, v{t + 1}, {sr(S_WS, 4)}, s15 offen sc1
        buffer_store_dwordx4 {vr(self.wr + 4, 4)}, v{t + 1}, {sr(S_WS, 4)}, s16 offen sc1
        """, "wst")

    def gate(self):
        t = self.t + 4
        for r in range(2):
            a(f"v_dot2_f32_bf16 v{t + r}, v{self.gx + 4 * r}, v{self.gw}, 0")
        for i in range(1, 4):
            for r in range(2):
                a(f"v_dot2_f32_bf16 v{t + r}, v{self.gx + 4 * r + i}, v{self.gw + i}, v{t + r}")
        for ctl in ("row_shr:1 row_mask:0xf bank_mask:0xf", "row_shr:2 row_mask:0xf bank_mask:0xf",
                    "row_shr:4 row_mask:0xf bank_mask:0xf", "row_shr:8 row_mask:0xf bank_mask:0xf",
                    "row_bcast:15 row_mask:0xa bank_mask:0xf", "row_bcast:31 row_mask:0xc bank_mask:0xf"):
            for r in range(2):
                a(f"v_add_f32_dpp v{t + r}, v{t + r}, v{t + r} {ctl}")
        for r in range(2):
            a(f"v_mul_f32 v{t + r}, {fb(-math.log2(math.e))}, v{t + r}")
        for r in range(2):
            a(f"v_exp_f32 v{t + r}, v{t + r}")
        for r in range(2):
            a(f"v_add_f32 v{t + r}, 1.0, v{t + r}")
        for r in range(2):
            a(f"v_rcp_f32 v{t + r}, v{t + r}")
        a(f"""
        s_lshl_b32 s15, s{sB}, 4
        s_add_u32 s15, s15, s{sC}
        s_lshl_b32 s15, s15, 2
        s_add_u32 s15, s15, s{sW4}
        s_lshl_b32 s15, s15, 3
        s_add_u32 s15, s15, {GATE}
        s_mov_b32 exec_lo, 0
        s_mov_b32 exec_hi, 0x80000000
        """)
        a(f"buffer_store_dwordx2 {vr(t, 2)}, v{self.zero}, {sr(S_WS, 4)}, s15 offen sc1", "wst")
        a("s_mov_b64 exec, -1")

    def signal(self):
        a.wait_vm("wst")
        ready_check(self.rdy, self.zero)
        a(f"""
        s_lshl_b32 s15, s14, 2
        s_and_b32 s16, s13, 3
        s_add_u32 s15, s15, s16
        s_lshl_b32 s15, s15, 2
        s_add_u32 s15, s15, s{sW4}
        """)
        signal(15, self.t, self.t + 1)


GP = 192
vLIN, vB0, vB1, vY0, vY1 = 171, 172, 173, 174, 175
sBOFF, sAOFF, sYOFF, sLDSW = 72, 73, 74, 75
sBEND, sAEND = 0, 1


def loader_p3_addr():
    a(f"""
    v_lshlrev_b32 v{vLIN}, 4, v{LANE}
    v_lshrrev_b32 v{vY1}, 3, v{LANE}
    v_and_b32 v{vB1}, 2, v{vY1}
    v_lshlrev_b32 v{vB1}, 1, v{vB1}
    v_and_b32 v{vB0}, 7, v{LANE}
    v_xor_b32 v{vB0}, v{vB0}, v{vB1}
    v_lshlrev_b32 v{vB0}, 4, v{vB0}
    v_mul_u32_u24 v{vY0}, {2 * Y_KC}, v{vY1}
    v_add_u32 v{vY0}, v{vY0}, v{vB0}
    v_lshl_add_u32 v{vB0}, v{vY1}, 10, v{vB0}
    v_add_u32 v{vB1}, {8192 - 1024}, v{vB0}
    v_add_u32 v{vY1}, {Y_KC - 1024}, v{vY0}
    s_lshl_b32 s{sLDSW}, s{sW4}, 11
    s_lshl_b32 s{sBOFF}, s{sW4}, 14
    s_lshl_b32 s3, s{sT}, 7
    s_add_u32 s{sBOFF}, s{sBOFF}, s3
    s_mul_i32 s{sAOFF}, s{sP}, {H_P}
    s_add_u32 s{sAOFF}, s{sAOFF}, s{sLDSW}
    s_add_u32 s{sAOFF}, s{sAOFF}, {HO}
    s_add_u32 s{sBEND}, s{sBOFF}, {28 * 65536}
    s_add_u32 s{sAEND}, s{sAOFF}, {28 * 8192}
    s_lshr_b32 s3, s{sJ}, 3
    s_lshl_b32 s3, s3, 1
    s_add_u32 s3, s3, s{sT}
    s_mul_i32 s3, s3, 7
    s_lshr_b32 s3, s3, 1
    s_cmp_ge_u32 s3, 28
    s_cselect_b32 s15, 28, 0
    s_sub_u32 s3, s3, s15
    s_lshl_b32 s15, s3, 16
    s_add_u32 s{sBOFF}, s{sBOFF}, s15
    s_lshl_b32 s15, s3, 13
    s_add_u32 s{sAOFF}, s{sAOFF}, s15
    s_mul_i32 s{sYOFF}, s{sW4}, {16 * Y_KC}
    s_lshl_b32 s3, s{sP}, 7
    s_add_u32 s{sYOFF}, s{sYOFF}, s3
    s_add_u32 s{sYOFF}, s{sYOFF}, {YO}
    """)


def issue_B(n):
    a(f"s_add_u32 m0, s{sLDSW}, {BRING + (n % NB) * 8192}")
    a(f"""
    buffer_load_dwordx4 v{vB0}, {sr(S_W2, 4)}, s{sBOFF} offen lds
    buffer_load_dwordx4 v{vB1}, {sr(S_W2, 4)}, s{sBOFF} offen offset:1024 lds
    """, f"B{n}")
    a(f"""
    s_add_u32 s{sBOFF}, s{sBOFF}, 65536
    s_cmp_eq_u32 s{sBOFF}, s{sBEND}
    s_cselect_b32 s3, {28 * 65536}, 0
    s_sub_u32 s{sBOFF}, s{sBOFF}, s3
    """)


def issue_A(n):
    a(f"s_add_u32 m0, s{sLDSW}, {ARING + (n % NA) * 8192}")
    if n < 28:
        a(f"""
        buffer_load_dwordx4 v{vLIN}, {sr(S_WS, 4)}, s{sAOFF} offen sc1 lds
        buffer_load_dwordx4 v{vLIN}, {sr(S_WS, 4)}, s{sAOFF} offen offset:1024 sc1 lds
        """, f"A{n}")
        a(f"""
        s_add_u32 s{sAOFF}, s{sAOFF}, 8192
        s_cmp_eq_u32 s{sAOFF}, s{sAEND}
        s_cselect_b32 s3, {28 * 8192}, 0
        s_sub_u32 s{sAOFF}, s{sAOFF}, s3
        """)
    else:
        a(f"""
        buffer_load_dwordx4 v{vY0}, {sr(S_WS, 4)}, s{sYOFF} offen sc1 lds
        buffer_load_dwordx4 v{vY1}, {sr(S_WS, 4)}, s{sYOFF} offen offset:1024 sc1 lds
        """, f"A{n}")
        a(f"s_add_u32 s{sYOFF}, s{sYOFF}, {64 * Y_KC}")


def sub_ggen():
    st, t = 60, 92
    a.label("L_ggen")
    a(f"""
    v_and_b32 v{t}, 31, v{LANE}
    s_lshl_b32 s15, s{sT}, 6
    v_add_u32 v{t}, s15, v{t}
    v_cvt_f32_u32 v{t}, v{t}
    v_lshrrev_b32 v{t + 1}, 5, v{LANE}
    v_cvt_f32_u32 v{t + 1}, v{t + 1}
    v_mul_f32 v{t + 1}, 0.25, v{t + 1}
    s_lshl_b32 s15, s{sW4}, 3
    v_cvt_f32_u32 v{t + 2}, s15
    """.replace("0.25", fb(0.25)))
    for wc in range(2):
        df, mu, a32 = t + 3, t + 4, t + 5
        c0, c1 = st + 16 * wc, st + 16 * wc + 8
        a(f"""
        v_add_f32 v{df}, {fb(32.0 * wc)}, v{t}
        v_mul_f32 v{df}, {fb(1 / 512)}, v{df}
        v_mul_f32 v{a32}, {fb(32.0)}, v{df}
        v_cos_f32 v{mu}, v{a32}
        v_fma_f32 v{c0}, v{t + 2}, v{df}, v{t + 1}
        v_add_f32 v{mu}, v{mu}, v{mu}
        """)
        for j in range(1, 8):
            a(f"v_add_f32 v{c0 + j}, v{c0 + j - 1}, v{df}")
        for j in range(8):
            a(f"v_add_f32 v{c1 + j}, v{c0 + j}, v{a32}")
        for j in range(16):
            a(f"v_cos_f32 v{c0 + j}, v{c0 + j}")
        cur, prev = c1, c0
        for sg in range(8):
            if sg >= 2:
                for j in range(8):
                    a(f"v_fma_f32 v{prev + j}, v{mu}, v{cur + j}, -v{prev + j}")
                cur, prev = prev, cur
            src = c0 if sg == 0 else cur
            for j in range(4):
                a(f"v_cvt_pk_bf16_f32 v{GP + 8 * sg + 4 * wc + j}, v{src + 2 * j}, v{src + 2 * j + 1}")
    skip = a.newlabel("gsp")
    a(f"""
    s_cmp_lg_u32 s{sW4}, 0
    s_cbranch_scc1 {skip}
    v_lshrrev_b32 v{t}, 5, v{LANE}
    v_and_b32 v{t}, v{t}, v{LANE}
    v_lshlrev_b32 v{t}, 15, v{t}
    v_or_b32 v{t}, 0x3f00, v{t}
    s_mov_b32 s15, 0xffff
    v_bfi_b32 v{GP}, s15, v{t}, v{GP}
    v_bfi_b32 v{GP + 4}, s15, v{t}, v{GP + 4}
    """)
    a.label(skip)
    a(f"s_setpc_b64 {sr(sRET, 2)}")


def loader1():
    vx, vw, t = 2, 6, 10
    sx, sw, sl = 22, 23, 24
    a(f"""
    v_lshrrev_b32 v{t}, 5, v{LANE}
    v_lshlrev_b32 v{t}, 4, v{t}
    v_bfe_u32 v{t + 1}, v{LANE}, 3, 2
    v_add_u32 v{t}, v{t}, v{t + 1}
    v_lshlrev_b32 v{t}, 16, v{t}
    v_lshrrev_b32 v{t + 1}, 4, v{LANE}
    v_and_b32 v{t + 2}, 7, v{LANE}
    v_xor_b32 v{t + 2}, v{t + 2}, v{t + 1}
    v_lshl_add_u32 v{vx}, v{t + 2}, 4, v{t}
    v_xor_b32 v{vx + 1}, 64, v{vx}
    v_add_u32 v{vx + 1}, {4 * 65536 - 1024}, v{vx + 1}
    v_add_u32 v{vx + 2}, {8 * 65536 - 2048}, v{vx}
    v_add_u32 v{vx + 3}, {8 * 65536 - 2048}, v{vx + 1}
    v_bfe_u32 v{t}, v{LANE}, 2, 2
    v_xor_b32 v{t}, v{t}, v{t + 1}
    v_and_b32 v{t + 2}, 3, v{LANE}
    v_lshl_add_u32 v{t}, v{t}, 2, v{t + 2}
    v_mul_u32_u24 v{t + 1}, 3584, v{t + 1}
    v_lshl_add_u32 v{vw}, v{t}, 4, v{t + 1}
    v_add_u32 v{vw + 1}, {14336 - 1024}, v{vw}
    v_add_u32 v{vw + 2}, {2 * (14336 - 1024)}, v{vw}
    v_add_u32 v{vw + 3}, {3 * (14336 - 1024)}, v{vw}
    s_lshl_b32 s{sx}, s{sB}, 2
    s_add_u32 s{sx}, s{sx}, s{sW4}
    s_lshl_b32 s{sx}, s{sx}, 10
    s_mul_i32 s{sw}, s{sW4}, {16 * 3584}
    s_lshl_b32 s3, s{sCB}, 8
    s_add_u32 s{sw}, s{sw}, s3
    s_lshl_b32 s{sl}, s{sW4}, 12
    s_lshr_b32 s81, s{sJ}, 3
    s_lshl_b32 s81, s81, 1
    s_add_u32 s81, s81, s{sT}
    s_waitcnt lgkmcnt(0)
    """)
    stamp("L", "ka")

    def stage(n):
        a(f"""
        s_and_b32 s81, s81, 7
        s_lshl_b32 s3, s81, 7
        s_add_u32 s3, s3, s{sx}
        s_add_u32 m0, s{sl}, {(n & 3) * 32768}
        """)
        for ii in range(4):
            a(f"buffer_load_dwordx4 v{vx + ii}, {sr(S_X, 4)}, s3 offen offset:{ii * 1024} lds", f"st{n}")
        a(f"""
        s_mul_i32 s3, s81, {64 * 3584}
        s_add_u32 s3, s3, s{sw}
        s_add_u32 m0, s{sl}, {(n & 3) * 32768 + 16384}
        s_add_u32 s81, s81, 1
        """)
        for ii in range(4):
            a(f"buffer_load_dwordx4 v{vw + ii}, {sr(S_W1, 4)}, s3 offen offset:{ii * 1024} lds", f"st{n}")

    stage(0)
    stamp("L", 1)
    rest_srds()
    loader_p3_addr()
    stage(1)
    sd = Side(12)
    for n in range(8):
        a.wait_vm(f"st{n}")
        a("s_barrier")
        if n == 0:
            stamp("L", 2)
        stamp("L", f"b{n}")
        if n <= 5:
            stage(n + 2)
        if n == 5:
            sd.issue()
        if n == 6:
            for m in range(0, 4):
                issue_B(m)
        if n == 7:
            for m in range(4, 8):
                issue_B(m)
    stamp("L", 3)
    sd.w_write()
    stamp("L", "ww")
    a("s_barrier")
    stamp("L", "E")
    for m in range(8, 12):
        issue_B(m)
    sd.w_store()
    stamp("L", "wst")
    sd.gate()
    sd.signal()
    stamp("L", "sig")
    a("s_branch L_load_common")


def loader2():
    a.label("L_load2")
    a.vm_reset()
    vx, vd, t = 2, 6, 160
    XS = 32
    sx, sg = 22, 23
    a(f"""
    v_lshrrev_b32 v{t}, 3, v{LANE}
    v_and_b32 v{t + 1}, 7, v{LANE}
    v_lshlrev_b32 v{t + 2}, 16, v{t}
    v_lshl_add_u32 v{vx}, v{t + 1}, 4, v{t + 2}
    v_add_u32 v{vx + 1}, {16 * 65536}, v{vx}
    v_add_u32 v{vx + 2}, {8 * 65536}, v{vx}
    v_add_u32 v{vx + 3}, {24 * 65536}, v{vx}
    s_lshl_b32 s{sx}, s{sB}, 2
    s_add_u32 s{sx}, s{sx}, s{sW4}
    s_lshl_b32 s{sx}, s{sx}, 10
    s_waitcnt lgkmcnt(0)
    """)
    for sgm in range(4):
        for ii in range(4):
            r = XS + 32 * sgm + 8 * ii
            a(f"""
            buffer_load_dwordx4 {vr(r, 4)}, v{vx + ii}, {sr(S_X, 4)}, s{sx} offen offset:{128 * sgm}
            buffer_load_dwordx4 {vr(r + 4, 4)}, v{vx + ii}, {sr(S_X, 4)}, s{sx} offen offset:{128 * sgm + 512}
            """, f"x{sgm}_{ii}")
    stamp("L", 1)
    rest_srds()
    sd = Side(176)
    sd.issue()
    a(f"""
    v_lshrrev_b32 v{t + 2}, 4, v{LANE}
    v_xor_b32 v{t + 1}, v{t + 1}, v{t + 2}
    v_lshlrev_b32 v{t + 1}, 4, v{t + 1}
    v_lshl_add_u32 v{vd}, v{t}, 7, v{t + 1}
    s_lshl_b32 s3, s{sW4}, 12
    s_add_u32 s3, s3, {UV}
    v_add_u32 v{vd}, s3, v{vd}
    v_xor_b32 v{vd + 1}, 64, v{vd}
    s_bitcmp0_b32 s2, 0
    s_cselect_b32 s{sg}, 1.0, -1.0
    s_mov_b32 s24, 0xffff0000
    """)
    loader_p3_addr()
    for sgm in range(4):
        for ii in range(4):
            r = XS + 32 * sgm + 8 * ii
            a.wait_vm(f"x{sgm}_{ii}")
            for q in range(4):
                a(f"""
                v_lshlrev_b32 v{t}, 16, v{r + q}
                v_lshlrev_b32 v{t + 1}, 16, v{r + 4 + q}
                v_and_b32 v{t + 2}, s24, v{r + q}
                v_and_b32 v{t + 3}, s24, v{r + 4 + q}
                v_fma_f32 v{t}, v{t + 1}, s{sg}, v{t}
                v_fma_f32 v{t + 2}, v{t + 3}, s{sg}, v{t + 2}
                v_cvt_pk_bf16_f32 v{r + q}, v{t}, v{t + 2}
                """)
            a(f"ds_write_b128 v{vd + (ii & 1)}, {vr(r, 4)} offset:{sgm * 16384 + ii * 1024}")
        if sgm == 2:
            sd.w_write()
        a("s_waitcnt lgkmcnt(0)\ns_barrier")
        if sgm == 0:
            stamp("L", 2)
    stamp("L", "E")
    sd.w_store()
    stamp("L", "wst")
    sd.gate()
    for m in range(10):
        issue_B(m)
    stamp("L", 3)
    sd.signal()
    stamp("L", "sig")


fC, fS, fN = 0, 8, 16
fM = 24
fT1c, fT1s, fT2c, fT2s = 48, 56, 64, 72
fWr, fWi = 80, 88
fWraw, fXA = 96, 104
fD, fE = 112, 128
fFR = 144
fG = 96
sFX, sFW, sFY, sFL, sFZ = 76, 77, 78, 79, 80


def sub_fconst():
    a.label("L_fconst")
    n, q4, t = 150, 151, 152
    a(f"""
    v_and_b32 v{n}, 15, v{LANE}
    v_cvt_f32_u32 v{n}, v{n}
    v_lshrrev_b32 v{q4}, 4, v{LANE}
    v_lshlrev_b32 v{q4}, 2, v{q4}
    v_cvt_f32_u32 v{q4}, v{q4}
    s_lshl_b32 s15, s{sW4}, 4
    v_cvt_f32_u32 v{t + 10}, s15
    """)
    ar = 112

    def sincos(cnt, cdst, sdst):
        for j in range(cnt):
            a(f"v_cos_f32 v{cdst + j}, v{ar + j}")
        for j in range(cnt):
            a(f"v_sin_f32 v{sdst + j}, v{ar + j}")

    for aa in range(2):
        a(f"""
        v_add_f32 v{t}, {fb(16.0 * aa)}, v{n}
        v_mul_f32 v{t}, {fb(1 / 32)}, v{t}
        v_mul_f32 v{ar}, v{q4}, v{t}
        v_mul_f32 v{t + 1}, {fb(16.0)}, v{t}
        """)
        for j in range(1, 4):
            a(f"v_add_f32 v{ar + j}, v{ar + j - 1}, v{t}")
        for j in range(4):
            a(f"v_add_f32 v{ar + 4 + j}, v{ar + j}, v{t + 1}")
        sincos(8, ar + 8, ar + 16)
        for j in range(4):
            a(f"v_cvt_pk_bf16_f32 v{fC + 4 * aa + j}, v{ar + 8 + 2 * j}, v{ar + 9 + 2 * j}")
            a(f"v_cvt_pk_bf16_f32 v{fS + 4 * aa + j}, v{ar + 16 + 2 * j}, v{ar + 17 + 2 * j}")
            a(f"v_xor_b32 v{fN + 4 * aa + j}, 0x80008000, v{fS + 4 * aa + j}")
    a(f"""
    v_add_f32 v{t + 2}, v{t + 10}, v{n}
    v_mul_f32 v{t}, {fb(1 / 64)}, v{t + 2}
    v_mul_f32 v{t + 1}, {fb(16.0)}, v{t}
    v_mul_f32 v{ar}, v{q4}, v{t}
    """)
    for j in range(1, 4):
        a(f"v_add_f32 v{ar + j}, v{ar + j - 1}, v{t}")
    for wp in range(4):
        if wp:
            for j in range(4):
                a(f"v_add_f32 v{ar + j}, v{ar + j}, v{t + 1}")
        sincos(4, ar + 8, ar + 16)
        m = fM + 6 * wp
        for j in range(2):
            a(f"v_cvt_pk_bf16_f32 v{m + 2 + j}, v{ar + 8 + 2 * j}, v{ar + 9 + 2 * j}")
            a(f"v_cvt_pk_bf16_f32 v{m + 4 + j}, v{ar + 16 + 2 * j}, v{ar + 17 + 2 * j}")
            a(f"v_xor_b32 v{m + j}, 0x80008000, v{m + 4 + j}")
    a(f"v_add_f32 v{t + 3}, v{t + 10}, v{q4}")
    for aa in range(2):
        a(f"""
        v_add_f32 v{t}, {fb(16.0 * aa)}, v{n}
        v_mul_f32 v{t}, {fb(1 / 2048)}, v{t}
        v_mul_f32 v{ar + 4 * aa}, v{t + 3}, v{t}
        """)
        for j in range(1, 4):
            a(f"v_add_f32 v{ar + 4 * aa + j}, v{ar + 4 * aa + j - 1}, v{t}")
    sincos(8, fT1c, fT1s)
    a(f"""
    v_mul_f32 v{t}, {fb(1 / 2048)}, v{t + 2}
    v_mul_f32 v{t + 1}, {fb(16.0)}, v{t}
    v_mul_f32 v{ar}, v{q4}, v{t}
    """)
    for j in range(1, 4):
        a(f"v_add_f32 v{ar + j}, v{ar + j - 1}, v{t}")
    for j in range(4):
        a(f"v_add_f32 v{ar + 4 + j}, v{ar + j}, v{t + 1}")
    sincos(8, fT2c, fT2s)
    a(f"""
    v_and_b32 v{t}, 15, v{LANE}
    v_lshrrev_b32 v{t + 1}, 4, v{LANE}
    v_lshlrev_b32 v160, 8, v{t}
    v_lshl_add_u32 v160, v{t + 1}, 6, v160
    v_lshlrev_b32 v161, 4, v{LANE}
    v_add_u32 v163, s{sFL}, v161
    s_lshl_b32 s15, s{sW4}, 11
    v_add_u32 v162, s15, v163
    v_lshlrev_b32 v164, 6, v{t}
    v_lshl_add_u32 v164, v{t + 1}, 4, v164
    s_setpc_b64 {sr(sRET, 2)}
    """)


def fft_params(loader):
    if loader:
        a(f"""
        s_lshl_b32 s3, s{sW4}, 12
        s_add_u32 s{sFX}, s3, {X1 + 16}
        s_lshl_b32 s3, s{sW4}, 11
        s_add_u32 s{sFW}, s3, {WT + 256 * WT_K}
        s_lshl_b32 s3, s{sW4}, 10
        s_add_u32 s{sFY}, s3, {YO + Y_KC}
        s_mov_b32 s{sFL}, {EXCH2}
        s_mov_b32 s{sFZ}, 1
        """)
        return
    a(f"""
    s_and_b32 s13, s{sK}, 1
    s_lshl_b32 s13, s13, 6
    s_lshr_b32 s14, s{sK}, 2
    s_add_u32 s13, s13, s14
    s_mul_i32 s{sFX}, s13, {X1_CG}
    s_and_b32 s13, s{sK}, 2
    s_lshl_b32 s13, s13, 4
    s_add_u32 s{sFX}, s{sFX}, s13
    s_lshl_b32 s13, s{sW4}, 12
    s_add_u32 s{sFX}, s{sFX}, s13
    s_add_u32 s{sFX}, s{sFX}, {X1}
    s_mul_i32 s{sFW}, s{sK}, {WT_K}
    s_lshl_b32 s13, s{sW4}, 11
    s_add_u32 s{sFW}, s{sFW}, s13
    s_add_u32 s{sFW}, s{sFW}, {WT}
    s_mul_i32 s{sFY}, s{sK}, {2 * Y_KC}
    s_lshl_b32 s13, s{sW4}, 10
    s_add_u32 s{sFY}, s{sFY}, s13
    s_add_u32 s{sFY}, s{sFY}, {YO}
    s_mov_b32 s{sFL}, {EXCH}
    s_cmp_eq_u32 s{sK}, 0
    s_cselect_b32 s{sFZ}, 1, 0
    """)


def mf16(d, x, y, c):
    a(f"v_mfma_f32_16x16x32_bf16 {vr(d, 4)}, {vr(x, 4)}, {vr(y, 4)}, {c if c == '0' else vr(c, 4)}")


def mf32(d, x, y, c):
    a(f"v_mfma_f32_32x32x16_bf16 {vr(d, 16)}, {vr(x, 4)}, {vr(y, 4)}, {c if c == '0' else vr(c, 16)}")


def cmul(re, im, c, s, ore, oim, conj_w):
    p = lambda r: vr(r, 2)
    for h in (0, 2):
        a(f"v_pk_mul_f32 {p(ore + h)}, {p(re + h)}, {p(c + h)}")
        a(f"v_pk_mul_f32 {p(oim + h)}, {p(im + h)}, {p(c + h)}")
    for h in (0, 2):
        neg = "neg_lo:[1,0,0] neg_hi:[1,0,0]"
        a(f"v_pk_fma_f32 {p(ore + h)}, {p(im + h)}, {p(s + h)}, {p(ore + h)} {'' if conj_w else neg}")
        a(f"v_pk_fma_f32 {p(oim + h)}, {p(re + h)}, {p(s + h)}, {p(oim + h)} {neg if conj_w else ''}")


def sub_fft():
    a.label("L_fft")
    a.vm_reset()
    a(f"""
    buffer_load_dwordx4 {vr(fXA, 4)}, v160, {sr(S_WS, 4)}, s{sFX} offen sc1
    buffer_load_dwordx4 {vr(fXA + 4, 4)}, v160, {sr(S_WS, 4)}, s{sFX} offen offset:16 sc1
    """, "x1")
    a(f"""
    buffer_load_dwordx4 {vr(fWraw, 4)}, v161, {sr(S_WS, 4)}, s{sFW} offen sc1
    buffer_load_dwordx4 {vr(fWraw + 4, 4)}, v161, {sr(S_WS, 4)}, s{sFW} offen offset:1024 sc1
    """, "wt")
    a.wait_vm("x1")
    nz = a.newlabel("nz")
    a(f"s_cmp_eq_u32 s{sFZ}, 0\ns_cbranch_scc1 {nz}")
    for j in range(4):
        a(f"v_mov_b32 v{fXA + 4 + j}, 0")
    a.label(nz)
    a("s_nop 1")
    xre, xim = fXA, fXA + 4
    D = lambda aa, c: fD + 8 * aa + 4 * c
    E = lambda aa, c: fE + 8 * aa + 4 * c
    for aa in range(2):
        mf16(D(aa, 0), xre, fC + 4 * aa, "0")
        mf16(D(aa, 1), xim, fC + 4 * aa, "0")
        mf16(D(aa, 0), xim, fS + 4 * aa, D(aa, 0))
        mf16(D(aa, 1), xre, fN + 4 * aa, D(aa, 1))
    a.wait_vm("wt")
    for j in range(8):
        a(f"v_lshlrev_b32 v{fWr + j}, 16, v{fWraw + j}")
        a(f"v_and_b32 v{fWi + j}, 0xffff0000, v{fWraw + j}")

    def pack_exchange(ex, negim):
        for aa in range(2):
            n = "-" if negim else ""
            a(f"""
            v_cvt_pk_bf16_f32 v{fFR + 4 * aa}, v{E(aa, 0)}, v{E(aa, 0) + 1}
            v_cvt_pk_bf16_f32 v{fFR + 4 * aa + 1}, v{E(aa, 0) + 2}, v{E(aa, 0) + 3}
            v_cvt_pk_bf16_f32 v{fFR + 4 * aa + 2}, {n}v{E(aa, 1)}, {n}v{E(aa, 1) + 1}
            v_cvt_pk_bf16_f32 v{fFR + 4 * aa + 3}, {n}v{E(aa, 1) + 2}, {n}v{E(aa, 1) + 3}
            ds_write_b128 v162, {vr(fFR + 4 * aa, 4)} offset:{ex * 8192 + aa * 1024}
            """)
        a("s_waitcnt lgkmcnt(0)\ns_barrier")
        for f in range(8):
            a(f"ds_read_b128 {vr(fG + 4 * f, 4)}, v163 offset:{ex * 8192 + f * 1024}")

    for aa in range(2):
        cmul(D(aa, 0), D(aa, 1), fT1c + 4 * aa, fT1s + 4 * aa, E(aa, 0), E(aa, 1), True)
    pack_exchange(0, False)
    for wp in range(4):
        for aa in range(2):
            a(f"s_waitcnt lgkmcnt({7 - 2 * wp - aa})")
            mf16(E(aa, 0), fM + 6 * wp + 2, fG + 8 * wp + 4 * aa, "0" if wp == 0 else E(aa, 0))
            mf16(E(aa, 1), fM + 6 * wp, fG + 8 * wp + 4 * aa, "0" if wp == 0 else E(aa, 1))
    for aa in range(2):
        cmul(E(aa, 0), E(aa, 1), fWr + 4 * aa, fWi + 4 * aa, D(aa, 0), D(aa, 1), False)
    D, E = E, D
    pack_exchange(1, True)
    D, E = E, D
    for wp in range(4):
        for aa in range(2):
            a(f"s_waitcnt lgkmcnt({7 - 2 * wp - aa})")
            mf16(E(aa, 0), fG + 8 * wp + 4 * aa, fM + 6 * wp + 2, "0" if wp == 0 else E(aa, 0))
            mf16(E(aa, 1), fG + 8 * wp + 4 * aa, fM + 6 * wp, "0" if wp == 0 else E(aa, 1))
    for aa in range(2):
        cmul(E(aa, 0), E(aa, 1), fT2c + 4 * aa, fT2s + 4 * aa, D(aa, 0), D(aa, 1), True)
    for c in range(2):
        for aa in range(2):
            a(f"v_cvt_pk_bf16_f32 v{fFR + 4 * c + 2 * aa}, v{D(aa, c)}, v{D(aa, c) + 1}")
            a(f"v_cvt_pk_bf16_f32 v{fFR + 4 * c + 2 * aa + 1}, v{D(aa, c) + 2}, v{D(aa, c) + 3}")
    bre, bim = fFR, fFR + 4
    for mu in range(2):
        mf16(E(mu, 0), fC + 4 * mu, bre, "0")
    for mu in range(2):
        mf16(E(mu, 0), fS + 4 * mu, bim, E(mu, 0))
    for mu in range(2):
        mf16(E(mu, 1), fC + 4 * mu, bim, "0")
    for mu in range(2):
        mf16(E(mu, 1), fN + 4 * mu, bre, E(mu, 1))
    o = fD
    for mu in range(2):
        a(f"v_cvt_pk_bf16_f32 v{o + 2 * mu}, v{E(mu, 0)}, v{E(mu, 0) + 1}")
        a(f"v_cvt_pk_bf16_f32 v{o + 2 * mu + 1}, v{E(mu, 0) + 2}, v{E(mu, 0) + 3}")
    a(f"buffer_store_dwordx4 {vr(o, 4)}, v164, {sr(S_WS, 4)}, s{sFY} offen sc1")
    done = a.newlabel("fdone")
    a(f"s_cmp_lg_u32 s{sFZ}, 0\ns_cbranch_scc1 {done}")
    for mu in range(2):
        a(f"v_cvt_pk_bf16_f32 v{o + 4 + 2 * mu}, -v{E(mu, 1)}, -v{E(mu, 1) + 1}")
        a(f"v_cvt_pk_bf16_f32 v{o + 5 + 2 * mu}, -v{E(mu, 1) + 2}, -v{E(mu, 1) + 3}")
    a(f"s_add_u32 s3, s{sFY}, {Y_KC}")
    a(f"buffer_store_dwordx4 {vr(o + 4, 4)}, v164, {sr(S_WS, 4)}, s3 offen sc1")
    a.label(done)
    a(f"s_setpc_b64 {sr(sRET, 2)}")


def loader_common():
    a.label("L_load_common")
    a.vm_reset()
    nf, bx, nf2, after = (a.newlabel(s) for s in ("nf", "bx", "nf2", "afft"))
    a("v_mov_b32 v160, 0\nv_mov_b32 v161, 0\nv_mov_b32 v164, 0")
    a(f"s_cmp_lg_u32 s2, {FFT_WG}\ns_cbranch_scc1 {nf}")
    a(f"s_call_b64 {sr(sRET, 2)}, L_ggen")
    fft_params(True)
    a(f"s_call_b64 {sr(sRET, 2)}, L_fconst")
    a.label(nf)
    a(f"""
    s_cmp_lg_u32 s{sW4}, 0
    s_cbranch_scc1 {bx}
    s_lshr_b32 s13, s{sK}, 6
    s_cmp_eq_u32 s{sK}, 0
    s_cselect_b32 s14, 3, s13
    s_lshl_b32 s14, s14, 4
    s_sub_u32 s14, s14, 16
    s_and_b32 s15, s{sK}, 1
    s_lshl_b32 s15, s15, 2
    s_add_u32 s15, s15, s13
    s_add_u32 s15, s15, {LN_X1}
    s_lshl_b32 s13, s13, 4
    v_add_u32 v166, s13, v{LANE}
    v_add_u32 v167, s14, v{LANE}
    v_cmp_gt_u32 vcc, 16, v{LANE}
    v_cndmask_b32 v166, v167, v166, vcc
    v_mov_b32 v167, s15
    v_cmp_gt_u32 vcc, 32, v{LANE}
    v_cndmask_b32 v166, v167, v166, vcc
    v_lshlrev_b32 v166, 7, v166
    """)
    spin_until(166, 167, S_WS, 16)
    a.label(bx)
    stamp("L", 4)
    late = a.newlabel("late")
    a(f"""
    s_barrier
    s_cmp_lg_u32 s{sT}, 7
    s_cbranch_scc1 {late}
    """)
    issue_B(10)
    issue_B(11)
    a.label(late)
    a(f"""
    s_cmp_lg_u32 s2, {FFT_WG}
    s_cbranch_scc1 {nf2}
    s_call_b64 {sr(sRET, 2)}, L_fft
    s_branch {after}
    """)
    a.label(nf2)
    a(f"s_call_b64 {sr(sRET, 2)}, L_ggen")
    a("s_barrier\ns_barrier")
    a.label(after)
    stamp("L", 5)
    a(f"""
    s_lshl_b32 s13, s{sP}, 2
    s_add_u32 s13, s13, {LN_H}
    v_and_b32 v166, 3, v{LANE}
    v_add_u32 v166, s13, v166
    v_lshlrev_b32 v166, 7, v166
    s_add_u32 s13, s{sLDSW}, {BRING}
    v_add_u32 v168, s13, v{vLIN}
    v_add_u32 v169, 65536, v168
    """)
    spin_until(166, 167, S_WS, 7)
    stamp("L", 6)
    for n in range(NA - 2):
        issue_A(n)
    for n in range(36):
        tags = [f"A{n}"] + ([f"B{n}"] if NB <= n < 28 else [])
        a.wait_vm(*tags, extra="lgkmcnt(0)" if n > 30 - NB else "")
        a("s_barrier")
        if n == 0:
            stamp("L", 7)
        stamp("L", f"p{n}")
        if n + NA - 2 < 36:
            issue_A(n + NA - 2)
        m = n + NB - 2
        if NB <= m < 28:
            issue_B(m)
        if 28 <= m < 36:
            off = (m % NB) * 8192
            base, off = (168, off) if off < 65536 - 8192 else (169, off - 65536) if off >= 65536 else (168, off)
            for wc in range(2):
                a(f"ds_write_b128 v{base}, {vr(GP + 8 * (m - 28) + 4 * wc, 4)} offset:{off + wc * 1024}")
    stamp("L", 8)
    prof_store()
    a("s_endpgm")


def consumer_entry():
    a.label("L_cons")
    a.vm_reset()
    nz = a.newlabel("nzero")
    rest_srds()
    nopf = a.newlabel("nopf")
    a(f"""
    s_cmp_lg_u32 s{sWAVE}, 1
    s_cbranch_scc1 {nopf}
    s_getpc_b64 s[14:15]
    """)
    a.label("L_pcref")
    a(f"""
    s_sub_u32 s14, s14, L_pcref-{NAME}
    s_subb_u32 s15, s15, 0
    s_and_b32 s3, s{sJ}, 7
    s_lshl_b32 s3, s3, 6
    v_add_u32 v2, s3, v{LANE}
    v_min_u32 v2, (L_codeend-{NAME})/128, v2
    v_lshlrev_b32 v2, 7, v2
    global_load_dword v255, v2, s[14:15]
    """)
    a.label(nopf)
    a(f"""
    s_waitcnt lgkmcnt(0)
    s_or_b32 s3, s2, s{sWAVE}
    s_cmp_lg_u32 s3, 0
    s_cbranch_scc1 {nz}
    v_lshlrev_b32 v2, 7, v{LANE}
    v_mov_b32 v3, 0
    s_mov_b32 s13, 8192
    s_mov_b32 s14, 16384
    s_mov_b32 s15, 24576
    buffer_store_dword v3, v2, {sr(S_WS, 4)}, 0 offen sc1
    buffer_store_dword v3, v2, {sr(S_WS, 4)}, s13 offen sc1
    buffer_store_dword v3, v2, {sr(S_WS, 4)}, s14 offen sc1
    buffer_store_dword v3, v2, {sr(S_WS, 4)}, s15 offen sc1
    v_mov_b32 v4, 1
    s_waitcnt vmcnt(0)
    s_mov_b64 exec, 1
    buffer_store_dword v4, v3, {sr(S_DBG, 4)}, 0 offen sc1
    s_mov_b64 exec, -1
    """)
    a.label(nz)
    a.vm_reset()
    a(f"s_cmp_eq_u32 s{sT}, 7\ns_cbranch_scc1 L_cons2")


def consumer1():
    ACC, BI, FR, ad, t = 0, 64, 96, 128, 136
    sWR, sWC = 22, 23
    a(f"""
    s_lshr_b32 s{sWR}, s{sW4}, 1
    s_and_b32 s{sWC}, s{sW4}, 1
    v_lshrrev_b32 v{t}, 5, v{LANE}
    v_lshlrev_b32 v{t + 1}, 3, v{t}
    s_lshl_b32 s13, s{sCB}, 1
    s_add_u32 s13, s13, s{sWC}
    s_lshl_b32 s13, s13, 7
    """)
    for mt in range(2):
        for jj in range(4):
            a(f"buffer_load_dwordx2 {vr(FR + 8 * mt + 2 * jj, 2)}, v{t + 1}, {sr(S_B1, 4)}, s13 offen offset:{64 * mt + 16 * jj}", "bias")
    a(f"""
    v_and_b32 v{t + 1}, 31, v{LANE}
    v_bfe_u32 v{t + 2}, v{LANE}, 1, 3
    v_xor_b32 v{t + 2}, v{t + 2}, v{t}
    v_lshlrev_b32 v{t + 2}, 4, v{t + 2}
    v_lshl_add_u32 v{ad}, v{t + 1}, 7, v{t + 2}
    s_lshl_b32 s13, s{sWR}, 13
    v_add_u32 v{ad}, s13, v{ad}
    v_xor_b32 v{ad + 1}, 32, v{ad}
    v_xor_b32 v{ad + 2}, 64, v{ad}
    v_xor_b32 v{ad + 3}, 96, v{ad}
    v_bfe_u32 v{t + 1}, v{LANE}, 2, 2
    v_lshl_add_u32 v{t + 2}, v{t}, 3, v{t + 1}
    v_lshlrev_b32 v{t + 2}, 8, v{t + 2}
    s_lshl_b32 s13, s{sWC}, 1
    v_xor_b32 v{t + 1}, s13, v{t + 1}
    v_lshl_add_u32 v{t + 2}, v{t + 1}, 6, v{t + 2}
    v_bfe_u32 v{t + 1}, v{LANE}, 4, 1
    v_lshl_add_u32 v{t + 2}, v{t + 1}, 5, v{t + 2}
    v_and_b32 v{t + 1}, 3, v{LANE}
    v_lshl_add_u32 v{t + 2}, v{t + 1}, 3, v{t + 2}
    v_add_u32 v{ad + 4}, 16384, v{t + 2}
    v_xor_b32 v{ad + 5}, 64, v{ad + 4}
    """)
    a.wait_vm("bias")
    for i in range(16):
        a(f"v_lshlrev_b32 v{BI + 2 * i}, 16, v{FR + i}")
        a(f"v_and_b32 v{BI + 2 * i + 1}, 0xffff0000, v{FR + i}")
    acc = lambda mt, nt: ACC + 32 * mt + 16 * nt

    def reads(step):
        n, ks = divmod(step, 4)
        f = FR + 16 * (step & 1)
        off = (n & 1) * 32768
        return [f"ds_read_b128 {vr(f, 4)}, v{ad + ks} offset:{off}",
                f"ds_read_b64_tr_b16 {vr(f + 8, 2)}, v{ad + 4} offset:{off + ks * 4096}",
                f"ds_read_b64_tr_b16 {vr(f + 10, 2)}, v{ad + 4} offset:{off + ks * 4096 + 1024}",
                f"ds_read_b128 {vr(f + 4, 4)}, v{ad + ks} offset:{off + 4096}",
                f"ds_read_b64_tr_b16 {vr(f + 12, 2)}, v{ad + 5} offset:{off + ks * 4096}",
                f"ds_read_b64_tr_b16 {vr(f + 14, 2)}, v{ad + 5} offset:{off + ks * 4096 + 1024}"]

    def mfmas(step):
        f = FR + 16 * (step & 1)
        out = []
        for mt, nt in ((0, 0), (0, 1), (1, 0), (1, 1)):
            out.append((acc(mt, nt), f + 8 + 4 * mt, f + 4 * nt, BI + 16 * mt if step == 0 else acc(mt, nt)))
        return out

    stamp("C", 1)
    a("s_barrier")
    stamp("C", 2)
    for r in reads(0):
        a(r)
    for step in range(32):
        nxt = step + 1
        a("s_waitcnt lgkmcnt(0)")
        rd = []
        if nxt < 32:
            if nxt % 4 == 0:
                a("s_barrier")
                if nxt % 8 == 0:
                    for i in range(6):
                        a(f"v_xor_b32 v{ad + i}, 0x10000, v{ad + i}")
            rd = reads(nxt)
        ms = mfmas(step)
        for i, m in enumerate(ms):
            mf32(*m)
            for r in rd[3 * i:3 * i + 3]:
                a(r)
    stamp("C", 3)
    rdy, zero, lin, T, O = 171, 141, 142, 144, 64
    c = math.sqrt(2 / math.pi)
    c1 = -2 * c * math.log2(math.e)
    a(f"""
    v_mov_b32 v{zero}, 0
    v_lshlrev_b32 v{lin}, 4, v{LANE}
    s_mov_b32 s16, {fb(c1 * 0.044715)}
    s_mov_b32 s17, s16
    v_mov_b32 v160, {fb(c1)}
    v_mov_b32 v161, {fb(c1)}
    s_lshl_b32 s13, s{sB}, 1
    s_add_u32 s13, s13, s{sWR}
    s_mul_i32 s14, s13, {H_P}
    s_lshl_b32 s15, s{sCB}, 1
    s_add_u32 s15, s15, s{sWC}
    s_lshl_b32 s19, s15, 13
    s_add_u32 s14, s14, s19
    s_add_u32 s14, s14, {HO}
    s_add_u32 s18, s14, 4096
    s_lshl_b32 s13, s13, 2
    s_and_b32 s15, s15, 3
    s_add_u32 s13, s13, s15
    s_add_u32 s13, s13, {LN_H}
    """)
    ready_load(rdy, zero)
    for ti, (mt, nt) in enumerate(((0, 0), (0, 1), (1, 0), (1, 1))):
        x0 = acc(mt, nt)
        P = lambda r: vr(r, 2)
        for h in range(0, 16, 2):
            a(f"v_pk_mul_f32 {P(T + h)}, {P(x0 + h)}, {P(x0 + h)}")
        for h in range(0, 16, 2):
            a(f"v_pk_fma_f32 {P(T + h)}, {P(T + h)}, s[16:17], v[160:161]")
        for h in range(0, 16, 2):
            a(f"v_pk_mul_f32 {P(T + h)}, {P(T + h)}, {P(x0 + h)}")
        for h in range(16):
            a(f"v_exp_f32 v{T + h}, v{T + h}")
        for h in range(0, 16, 2):
            a(f"v_pk_add_f32 {P(T + h)}, {P(T + h)}, 1.0 op_sel_hi:[1,0]")
        for h in range(16):
            a(f"v_rcp_f32 v{T + h}, v{T + h}")
        for h in range(0, 16, 2):
            a(f"v_pk_mul_f32 {P(T + h)}, {P(T + h)}, {P(x0 + h)}")
        o = O + 8 * ti
        for h in range(8):
            a(f"v_cvt_pk_bf16_f32 v{o + h}, v{T + 2 * h}, v{T + 2 * h + 1}")
        for tp in range(2):
            a(f"buffer_store_dwordx4 {vr(o + 4 * tp, 4)}, v{lin}, {sr(S_WS, 4)}, s{14 if mt == 0 else 18} offen offset:{tp * 2048 + nt * 1024} sc1", "h")
        if ti == 0:
            a("s_barrier")
    stamp("C", 4)
    a("s_mov_b32 s81, s13\ns_branch L_cons_common")


def consumer2():
    a.label("L_cons2")
    a.vm_reset()
    ACC, AF, ST, BF, ad, t = 0, 128, 176, 208, 224, 228
    mu = 236
    acc = lambda rt, ct: ACC + 32 * rt + 16 * ct
    a(f"""
    v_lshrrev_b32 v{t}, 5, v{LANE}
    v_and_b32 v{t + 1}, 31, v{LANE}
    v_bfe_u32 v{t + 2}, v{LANE}, 1, 3
    v_xor_b32 v{t + 2}, v{t + 2}, v{t}
    v_lshlrev_b32 v{t + 2}, 4, v{t + 2}
    v_lshl_add_u32 v{ad}, v{t + 1}, 7, v{t + 2}
    v_add_u32 v{ad}, {UV}, v{ad}
    v_xor_b32 v{ad + 1}, 32, v{ad}
    v_xor_b32 v{ad + 2}, 64, v{ad}
    v_xor_b32 v{ad + 3}, 96, v{ad}
    v_lshlrev_b32 v{t}, 3, v{t}
    v_cvt_f32_u32 v{t}, v{t}
    s_lshl_b32 s13, s{sW4}, 6
    s_and_b32 s14, s2, 1
    s_lshl_b32 s15, s14, 10
    s_add_u32 s15, s15, s13
    """)
    for ct in range(2):
        c0, c1 = ST + 16 * ct, ST + 16 * ct + 8
        kf, ph, a16 = t + 3, t + 4, t + 5
        a(f"""
        v_add_u32 v{t + 2}, s13, v{t + 1}
        v_and_b32 v{ph}, 1, v{t + 2}
        v_and_b32 v{kf}, 0xfffe, v{t + 2}
        v_add_u32 v{kf}, s14, v{kf}
        v_add_u32 v{t + 2}, s15, v{t + 1}
        v_cmp_eq_u32 vcc, 1, v{t + 2}
        v_mov_b32 v{t + 2}, 0x100
        v_cndmask_b32 v{kf}, v{kf}, v{t + 2}, vcc
        v_cndmask_b32 v{ph}, v{ph}, 0, vcc
        v_cvt_f32_u32 v{kf}, v{kf}
        v_cvt_f32_u32 v{ph}, v{ph}
        v_mul_f32 v{kf}, {fb(1 / 512)}, v{kf}
        v_mul_f32 v{ph}, {fb(0.25)}, v{ph}
        v_mul_f32 v{a16}, {fb(16.0)}, v{kf}
        v_cos_f32 v{mu + ct}, v{a16}
        v_fma_f32 v{c0}, v{t}, v{kf}, v{ph}
        v_add_f32 v{mu + ct}, v{mu + ct}, v{mu + ct}
        s_add_u32 s13, s13, 32
        s_add_u32 s15, s15, 32
        """)
        for j in range(1, 8):
            a(f"v_add_f32 v{c0 + j}, v{c0 + j - 1}, v{kf}")
        for j in range(8):
            a(f"v_add_f32 v{c1 + j}, v{c0 + j}, v{a16}")
        for j in range(16):
            a(f"v_cos_f32 v{c0 + j}, v{c0 + j}")

    def gen(tau):
        out = []
        for ct in range(2):
            cur = ST + 16 * ct + 8 * (tau & 1)
            oth = ST + 16 * ct + 8 * (1 - (tau & 1))
            if tau >= 2:
                out += [f"v_fma_f32 v{cur + j}, v{mu + ct}, v{oth + j}, -v{cur + j}" for j in range(8)]
            out += [f"v_cvt_pk_bf16_f32 v{BF + 8 * (tau & 1) + 4 * ct + j}, v{cur + 2 * j}, v{cur + 2 * j + 1}" for j in range(4)]
        return out

    def reads(step):
        n, ks = divmod(step, 4)
        f = AF + 16 * (step & 1)
        return [f"ds_read_b128 {vr(f + 4 * rt, 4)}, v{ad + ks} offset:{n * 16384 + rt * 4096}" for rt in range(4)]

    for g in gen(0):
        a(g)
    stamp("C", 1)
    a("s_barrier")
    stamp("C", 2)
    for r in reads(0):
        a(r)
    for step in range(16):
        nxt = step + 1
        a("s_waitcnt lgkmcnt(0)")
        fill = []
        if nxt < 16:
            if nxt % 4 == 0:
                a("s_barrier")
            fill = reads(nxt) + gen(nxt)
        per = -(-len(fill) // 7)
        i = 0
        for rt in range(4):
            for ct in range(2):
                mf32(acc(rt, ct), AF + 16 * (step & 1) + 4 * rt, BF + 8 * (step & 1) + 4 * ct, "0" if step == 0 else acc(rt, ct))
                for f in fill[i * per:(i + 1) * per]:
                    a(f)
                i += 1
    stamp("C", 3)
    zero, va, O = 172, 173, 128
    a(f"""
    v_mov_b32 v{zero}, 0
    v_bfe_u32 v{t}, v{LANE}, 2, 3
    v_mul_u32_u24 v{t}, {X1_CG}, v{t}
    v_lshrrev_b32 v{t + 1}, 5, v{LANE}
    v_lshl_add_u32 v{t}, v{t + 1}, 6, v{t}
    v_and_b32 v{t + 1}, 3, v{LANE}
    v_lshl_add_u32 v{va}, v{t + 1}, 4, v{t}
    s_lshl_b32 s13, s14, 2
    s_add_u32 s13, s13, s{sW4}
    s_add_u32 s81, s13, {LN_X1}
    s_mul_i32 s13, s13, {16 * X1_CG}
    s_lshl_b32 s15, s{sB}, 10
    s_add_u32 s13, s13, s15
    s_add_u32 s13, s13, {X1}
    s_add_u32 s15, s13, {8 * X1_CG}
    """)
    ready_load(171, zero)
    i = 0
    for rt in range(4):
        for ct in range(2):
            o = O + 8 * (i % 4)
            i += 1
            for h in range(8):
                a(f"v_cvt_pk_bf16_f32 v{o + h}, v{acc(rt, ct) + 2 * h}, v{acc(rt, ct) + 2 * h + 1}")
            for tp in range(2):
                a(f"buffer_store_dwordx4 {vr(o + 4 * tp, 4)}, v{va}, {sr(S_WS, 4)}, s{13 if ct == 0 else 15} offen offset:{rt * 256 + tp * 128} sc1", "x1")
    stamp("C", 4)
    a.wait_vm_all()
    stamp("C", "x1d")
    ready_check(171, zero)
    signal(81, 172, 173)
    a("s_mov_b32 s81, -1")


def probe():
    arg = [x for x in sys.argv if x.startswith("--probe=")]
    if not arg:
        return
    koff, off, stride, n = (int(v, 0) for v in arg[0][8:].split(","))
    skip, top = a.newlabel("np"), a.newlabel("pl")
    a(f"""
    s_or_b32 s3, s2, s{sWAVE}
    s_cmp_lg_u32 s3, 0
    s_cbranch_scc1 {skip}
    s_load_dwordx2 s[16:17], s[0:1], {koff}
    s_mov_b32 s18, 0x10000000
    s_mov_b32 s19, 0x20000
    v_mov_b32 v20, {off}
    s_mov_b32 s3, 0
    s_waitcnt lgkmcnt(0)
    """)
    a.label(top)
    a(f"""
    buffer_load_dword v21, v20, s[16:19], 0 offen
    s_waitcnt vmcnt(0)
    v_and_b32 v21, 0, v21
    v_add_u32 v20, v20, v21
    v_add_u32 v20, {stride}, v20
    s_add_u32 s3, s3, 1
    s_cmp_lt_u32 s3, {n}
    s_cbranch_scc1 {top}
    """)
    a.label(skip)


def consumer_common():
    a.label("L_cons_common")
    a.vm_reset()
    AB, AA, FR = 176, 192, 0
    vA, vW, vY, vG, vO, vGv, vP, zero = 208, 210, 212, 214, 216, 217, 218, 172
    sWR, sWC = 22, 23
    t = 220
    a(f"""
    s_lshr_b32 s{sWR}, s{sW4}, 1
    s_and_b32 s{sWC}, s{sW4}, 1
    v_lshrrev_b32 v{t}, 5, v{LANE}
    v_lshlrev_b32 v{t + 1}, 3, v{t}
    s_lshl_b32 s13, s{sT}, 1
    s_add_u32 s13, s13, s{sWC}
    s_lshl_b32 s13, s13, 6
    """)
    for jj in range(4):
        a(f"buffer_load_dwordx2 {vr(t + 8 + 2 * jj, 2)}, v{t + 1}, {sr(S_B2, 4)}, s13 offen offset:{16 * jj}", "b2")
    fft_params(False)
    a(f"s_call_b64 {sr(sRET, 2)}, L_fconst")
    stamp("C", "fc")
    a(f"""
    v_lshlrev_b32 v{t + 1}, 4, v{LANE}
    s_lshl_b32 s13, s{sWR}, 10
    s_add_u32 s13, s13, {ARING}
    v_add_u32 v{vA}, s13, v{t + 1}
    s_lshl_b32 s13, s{sWC}, 10
    s_add_u32 s13, s13, {BRING}
    v_add_u32 v{vG}, s13, v{t + 1}
    v_add_u32 v{vG + 1}, 65536, v{vG}
    v_bfe_u32 v{t + 1}, v{LANE}, 2, 2
    v_bfe_u32 v{t + 2}, v{LANE}, 4, 1
    v_lshlrev_b32 v{t + 2}, 5, v{t + 2}
    v_lshl_add_u32 v{t + 2}, v{t + 1}, 7, v{t + 2}
    v_and_b32 v{t + 3}, 3, v{LANE}
    v_lshl_add_u32 v{t + 2}, v{t + 3}, 3, v{t + 2}
    v_lshrrev_b32 v{t + 1}, 1, v{t + 1}
    v_xor_b32 v{t + 3}, s{sWC}, v{t + 1}
    v_lshl_add_u32 v{t + 3}, v{t + 3}, 6, v{t + 2}
    v_lshl_add_u32 v{vW}, v{t}, 9, v{t + 3}
    v_add_u32 v{vW}, {BRING}, v{vW}
    v_add_u32 v{vW + 1}, 65536, v{vW}
    v_xor_b32 v{t + 3}, s{sWR}, v{t + 1}
    v_lshl_add_u32 v{t + 3}, v{t + 3}, 6, v{t + 2}
    v_lshl_add_u32 v{vY}, v{t}, 10, v{t + 3}
    v_add_u32 v{vY}, {ARING}, v{vY}
    v_bfe_u32 v{t + 1}, v{LANE}, 2, 1
    v_lshlrev_b32 v{t + 1}, 4, v{t + 1}
    v_bfe_u32 v{t + 2}, v{LANE}, 3, 2
    v_lshl_add_u32 v{t + 1}, v{t + 2}, 2, v{t + 1}
    v_and_b32 v{t + 2}, 3, v{LANE}
    v_add_u32 v{t + 1}, v{t + 1}, v{t + 2}
    v_lshlrev_b32 v{t + 1}, 16, v{t + 1}
    v_lshl_add_u32 v{vO}, v{t}, 4, v{t + 1}
    v_and_b32 v{vP}, 15, v{LANE}
    v_add_u32 v{vP}, {LN_Y}, v{vP}
    v_lshlrev_b32 v{vP}, 7, v{vP}
    v_mov_b32 v{zero}, 0
    """)
    a.wait_vm_all()
    for i in range(8):
        a(f"v_lshlrev_b32 v{AB + 2 * i}, 16, v{t + 8 + i}")
        a(f"v_and_b32 v{AB + 2 * i + 1}, 0xffff0000, v{t + 8 + i}")
    nosig = a.newlabel("nosig")
    a(f"s_cmp_eq_u32 s81, -1\ns_cbranch_scc1 {nosig}")
    ready_check(171, zero)
    signal(81, 173, 174)
    a.label(nosig)
    stamp("C", 5)
    a("s_barrier")
    stamp("C", 6)
    a(f"s_call_b64 {sr(sRET, 2)}, L_fft")
    stamp("C", 7)
    a.vm_reset()

    def reads(n, u):
        f = FR + 32 * (n & 1) + 8 * u
        oa = (n % NA) * 8192 + u * 2048
        ob = (n % NB) * 8192
        hi, ob = (0, ob) if ob < 65536 else (1, ob - 65536)
        ob += u * 2048
        if n < 28:
            return [f"ds_read_b64_tr_b16 {vr(f, 2)}, v{vW + hi} offset:{ob}",
                    f"ds_read_b64_tr_b16 {vr(f + 2, 2)}, v{vW + hi} offset:{ob + 1024}",
                    f"ds_read_b128 {vr(f + 4, 4)}, v{vA} offset:{oa}"]
        return [f"ds_read_b128 {vr(f, 4)}, v{vG + hi} offset:{ob}",
                f"ds_read_b64_tr_b16 {vr(f + 4, 2)}, v{vY} offset:{oa}",
                f"ds_read_b64_tr_b16 {vr(f + 6, 2)}, v{vY} offset:{oa + 512}"]

    def mfma(n, u):
        f = FR + 32 * (n & 1) + 8 * u
        acc = AB if n < 28 else AA
        mf32(acc, f, f + 4, "0" if (n, u) == (28, 0) else acc)

    YDRAIN, YPOLL, YNEED = 9, 26 - NA, 30 - NA
    for n in range(37):
        if n == YDRAIN:
            a.wait_vm_all()
        if n == YNEED:
            ok = a.newlabel("yok")
            stamp("C", "yneed")
            a.wait_vm_all()
            a(f"v_cmp_ne_u32 vcc, 16, v{t}\ns_cbranch_vccz {ok} ; safe")
            spin_until(vP, t, S_WS, 16)
            a.label(ok)
        if n < 36:
            a("s_barrier")
        if n == 0:
            stamp("C", 8)
        stamp("C", f"p{n}")
        if n == YDRAIN:
            ns = a.newlabel("nys")
            a(f"""
            s_cmp_lg_u32 s{sW4}, 0
            s_cbranch_scc1 {ns} ; safe
            s_and_b32 s13, s2, 15
            s_add_u32 s13, s13, {LN_Y}
            """)
            signal(13, 173, 174)
            a.label(ns)
            a.vm_reset()
        if n == YPOLL:
            a(f"buffer_load_dword v{t}, v{vP}, {sr(S_WS, 4)}, 0 offen sc1")
        if n == YNEED:
            a(f"""
            s_lshl_b32 s13, s{sP}, 1
            s_add_u32 s13, s13, s{sWR}
            s_lshl_b32 s14, s13, 7
            s_add_u32 s14, s14, {GATE}
            v_and_b32 v{t + 1}, 31, v{LANE}
            v_lshlrev_b32 v{t + 1}, 2, v{t + 1}
            buffer_load_dword v{vGv}, v{t + 1}, {sr(S_WS, 4)}, s14 offen sc1
            s_lshl_b32 s13, s13, 10
            s_lshl_b32 s14, s{sT}, 1
            s_add_u32 s14, s14, s{sWC}
            s_lshl_b32 s14, s14, 6
            s_add_u32 s13, s13, s14
            """)
        for u in range(4):
            if n < 36:
                for r in reads(n, u):
                    a(r)
            if n >= 1:
                a(f"s_waitcnt lgkmcnt({12 if n < 36 else 9 - 3 * u})")
                mfma(n - 1, u)
    a.wait_vm_all()
    a(f"""
    v_sub_f32 v{t}, 1.0, v{vGv}
    v_mul_f32 v{t + 2}, {fb(2.0 ** -19)}, v{vGv}
    """)
    for h in range(0, 16, 2):
        a(f"v_pk_mul_f32 {vr(AB + h, 2)}, {vr(AB + h, 2)}, {vr(t, 2)} op_sel_hi:[1,0]")
    for h in range(0, 16, 2):
        a(f"v_pk_fma_f32 {vr(AB + h, 2)}, {vr(AA + h, 2)}, {vr(t + 2, 2)}, {vr(AB + h, 2)} op_sel_hi:[1,0,1]")
    for h in range(8):
        a(f"v_cvt_pk_bf16_f32 v{FR + h}, v{AB + 2 * h}, v{AB + 2 * h + 1}")
    for J in range(2):
        a(f"v_permlane32_swap_b32 v{FR + 4 * J}, v{FR + 4 * J + 2}")
        a(f"v_permlane32_swap_b32 v{FR + 4 * J + 1}, v{FR + 4 * J + 3}")
    for J in range(2):
        a(f"buffer_store_dwordx4 {vr(FR + 4 * J, 4)}, v{vO}, {sr(S_OUT, 4)}, s13 offen offset:{32 * J}")
    probe()
    if PROF:
        a("s_waitcnt vmcnt(0)")
    stamp("C", 9)
    prof_store()
    a.label("L_end")
    a("s_endpgm")


def main():
    entry()
    loader1()
    loader2()
    loader_common()
    sub_ggen()
    consumer_entry()
    consumer1()
    consumer2()
    consumer_common()
    sub_fconst()
    sub_fft()
    a.label("L_codeend")
    head = open("gated_mix__spectral_gfnet__dense_activation_gelu__prompt.s.ref").read().split("; Override")[0]
    txt = head + f"""; @launch grid=(256,1,1) block=(512,1,1) lds=163840
; One persistent launch. Waves 0-3 compute, waves 4-7 load. Phases: [x w1 -> gelu | row DFT] -> column FFT * W * inverse
; FFT -> [h w2 + inverse row DFT] -> gated mix. Workgroups hand data over through d_ws with counters (cleared by
; workgroup 0, announced in d_debug word 0). Generated by gen/gen.py.
.amdgcn_target "amdgcn-amd-amdhsa--gfx950"
.text
.globl {NAME}
.p2align 8
.type {NAME},@function
{NAME}:
""" + a.finish() + f""".section .rodata,"a"
.p2align 6
.amdhsa_kernel {NAME}
  .amdhsa_next_free_vgpr 256
  .amdhsa_next_free_sgpr 102
  .amdhsa_accum_offset 256
  .amdhsa_group_segment_fixed_size 0
  .amdhsa_kernarg_size 96
  .amdhsa_user_sgpr_count 2
  .amdhsa_user_sgpr_kernarg_segment_ptr 1
  .amdhsa_system_sgpr_workgroup_id_x 1
  .amdhsa_float_denorm_mode_32 3
.end_amdhsa_kernel
"""
    out = [x for x in sys.argv[1:] if not x.startswith("--")][0]
    open(out, "w").write(txt)


main()
```
